```python
import torch

def _softmax(x, axis=-1):
    return torch.softmax(x, dim=axis)

def _gelu(x):
    return torch.nn.functional.gelu(x, approximate='tanh')

def _silu(x):
    return torch.nn.functional.silu(x)

def _sigmoid(x):
    return torch.sigmoid(x)

def _layernorm(x, axis=-1, eps=1e-05):
    m = x.mean(dim=axis, keepdim=True)
    v = x.var(dim=axis, keepdim=True, unbiased=False)
    return (x - m) / torch.sqrt(v + eps)

def _scatter_add(tgt, idx, src, axis=0):
    return tgt.clone().index_add_(axis, idx, src)

def _segment_sum(src, seg, n):
    out = torch.zeros((n,) + src.shape[1:], dtype=src.dtype)
    return out.index_add_(0, seg, src)

def _pad(x, pw):
    flat = tuple((v for pair in reversed(pw) for v in pair))
    return torch.nn.functional.pad(x, flat)
kernel_name = 'standalone__window_attn_davit__vision'

def setup_inputs():

    _w = lambda a: (lambda t: t.to(torch.bfloat16) if t.is_floating_point() else t)(torch.as_tensor(a))
    HW = 224
    C0 = 192
    ws = 7
    nh = 4
    H = W = max(HW // ws * ws, ws)
    C = max(C0 // nh * nh, nh)
    k = 3
    return {'x': _w((lambda *s: torch.randn(*s, dtype=torch.bfloat16) * 1.6)(1, H, W, C)), 'dw_pe': _w((lambda *s: torch.randn(*s, dtype=torch.bfloat16) * 1.6)(k, k, C) * 0.1), 'w_qkv': _w((lambda *s: torch.randn(*s, dtype=torch.bfloat16) * 1.6)(C, 3 * C) * C ** (-0.5)), 'w_o': _w((lambda *s: torch.randn(*s, dtype=torch.bfloat16) * 0.4)(C, C) * C ** (-0.5))}

def reference(x, dw_pe, w_qkv, w_o):
    B, H, W, C = x.shape
    ws = 7
    nh = 4
    dh = C // nh
    kk = dw_pe.shape[0]
    pad = kk // 2
    xp = _pad(x, ((0, 0), (pad, pad), (pad, pad), (0, 0)))
    pe = torch.zeros_like(x)
    for i in range(kk):
        for j in range(kk):
            pe = pe + xp[:, i:i + H, j:j + W, :] * dw_pe[i, j][None, None, None, :]
    x0 = x + pe
    h = _layernorm(x0, axis=-1)
    hw = h.reshape(B, H // ws, ws, W // ws, ws, C)
    hw = (lambda x, *d: x.permute(*d))(hw, 0, 1, 3, 2, 4, 5)
    hw = hw.reshape(-1, ws * ws, C)
    qkv = (hw @ w_qkv).reshape(-1, ws * ws, 3, nh, dh)
    q = qkv[:, :, 0].clone()
    k = qkv[:, :, 1].clone()
    v = qkv[:, :, 2].clone()
    scale = dh ** (-0.5)
    attn = torch.einsum('wnhd,wmhd->whnm', q, k) * scale
    attn = _softmax(attn, axis=-1)
    out = torch.einsum('whnm,wmhd->wnhd', attn, v)
    out = out.reshape(-1, ws * ws, C) @ w_o
    out = out.reshape(B, H // ws, W // ws, ws, ws, C)
    out = (lambda x, *d: x.permute(*d))(out, 0, 1, 3, 2, 4, 5)
    out = out.reshape(B, H, W, C)
    return x0 + out
```

```python
import heapq

class R:
    __slots__ = ("f", "i", "n")
    def __init__(s, f, i, n=1): s.f, s.i, s.n = f, i, n
    def __getitem__(s, k):
        if isinstance(k, slice):
            a = k.start or 0; b = k.stop if k.stop is not None else s.n
            assert 0 <= a < b <= s.n, (s, k)
            return R(s.f, s.i + a, b - a)
        assert 0 <= k < s.n, (s, k)
        return R(s.f, s.i + k, 1)
    def __str__(s):
        return f"{s.f}{s.i}" if s.n == 1 else f"{s.f}[{s.i}:{s.i+s.n-1}]"
    __repr__ = __str__
    def regs(s): return [f"{s.f}{s.i+k}" for k in range(s.n)]

def regs_of(x):
    if isinstance(x, R): return x.regs()
    if isinstance(x, str):
        if x in ("vcc", "exec", "m0", "scc"): return [x]
    return []

class Ins:
    __slots__ = ("txt", "kind", "rd", "wr", "res_rd", "res_wr", "srcc", "ab", "tag", "sub", "idx", "prio",
                 "preds", "succs", "npred", "rt", "cost", "data", "bias", "arrive")
    def __init__(s, txt, kind, rd=(), wr=(), res_rd=(), res_wr=(), srcc=(), ab=(), tag="", sub=None, data=()):
        s.txt, s.kind = txt, kind
        s.rd, s.wr = set(rd), set(wr)
        s.res_rd, s.res_wr = set(res_rd), set(res_wr)
        s.srcc, s.ab = tuple(srcc), set(ab)
        s.tag, s.sub = tag, sub
        s.data = set(data)
        s.bias = 0
        s.arrive = 0

VALU_KINDS = ("valu", "trans", "perm")
COST = {"mfma": 8, "valu": 4, "trans": 8, "perm": 4, "dsr": 4, "dsw": 4, "vld": 4, "vst": 4, "dma": 4,
        "salu": 4, "bar": 8, "smem": 4, "smf": 12}
LAT_DS = 110
LAT_VM = 2500
VM_INFLIGHT = 12

class Prog:
    def __init__(s):
        s.ins = []
        s.tag = ""
        s.bias = 0
        s._bundle = None
    def add(s, i):
        i.tag = s.tag; i.bias = s.bias
        if s._bundle is not None: s._bundle.append(i)
        else: s.ins.append(i)
        return i
    def begin_bundle(s): s._bundle = []
    def end_bundle(s):
        sub = s._bundle; s._bundle = None
        b = Ins("", "bundle", sub=sub)
        written = set()
        for i in sub:
            b.rd |= i.rd; b.wr |= i.wr; b.res_rd |= i.res_rd; b.res_wr |= i.res_wr
        b.rd.discard("exec"); b.wr.discard("exec")
        b.tag = s.tag; b.bias = s.bias
        s.ins.append(b)
    def mfma(s, op, d, a, b, c):
        rd = regs_of(a) + regs_of(b) + regs_of(c)
        return s.add(Ins(f"{op} {d}, {a}, {b}, {c}", "mfma", rd, d.regs(), srcc=regs_of(c), ab=regs_of(a) + regs_of(b)))
    def mfma32(s, d, a, b, c):
        assert d.n == 4 and a.n == 4 and b.n == 4
        return s.mfma("v_mfma_f32_16x16x32_bf16", d, a, b, c)
    def mfma16(s, d, a, b, c):
        assert d.n == 4 and a.n == 2 and b.n == 2
        return s.mfma("v_mfma_f32_16x16x16_bf16", d, a, b, c)
    def v(s, op, d, *srcs, kind="valu", rmw=False, extra_wr=(), extra_rd=(), mods=""):
        rd = []
        txt = []
        for x in srcs:
            if isinstance(x, tuple):
                txt.append(x[0] % str(x[1])); rd += regs_of(x[1])
            else:
                txt.append(str(x)); rd += regs_of(x)
        if rmw: rd += regs_of(d)
        if op.startswith(("v_exp", "v_rcp", "v_rsq", "v_log", "v_sqrt")): kind = "trans"
        return s.add(Ins(f"{op} {d}, " + ", ".join(txt) + (" " + mods if mods else ""), kind, rd + list(extra_rd),
                         regs_of(d) + list(extra_wr)))
    def swap(s, op, a, b):
        return s.add(Ins(f"{op} {a}, {b}", "perm", a.regs() + b.regs(), a.regs() + b.regs()))
    def s(s_, op, d, *srcs, scc=False, rdscc=False):
        rd = []
        for x in srcs: rd += regs_of(x)
        wr = regs_of(d)
        if scc: wr = wr + ["scc"]
        if rdscc: rd = rd + ["scc"]
        return s_.add(Ins(f"{op} {d}" + "".join(f", {x}" for x in srcs), "salu", rd, wr))
    def scmp(s_, op, a, b):
        return s_.add(Ins(f"{op} {a}, {b}", "salu", regs_of(a) + regs_of(b), ["scc"]))
    def dsr(s, op, d, addr, off, res=()):
        assert 0 <= off < 65536, off
        return s.add(Ins(f"{op} {d}, {addr} offset:{off}", "dsr", addr.regs(), d.regs(), res_rd=res))
    def dsw(s, op, addr, data, off, res=()):
        assert 0 <= off < 65536, off
        return s.add(Ins(f"{op} {addr}, {data} offset:{off}", "dsw", addr.regs() + data.regs(), (), res_wr=res))
    def vld(s, op, d, voff, srd, soff, off=0, flags=""):
        assert 0 <= off < 4096
        o = f" offset:{off}" if off else ""
        return s.add(Ins(f"{op} {d}, {voff}, {srd}, {soff} offen{o} {flags}".rstrip(), "vld",
                         voff.regs() + srd.regs() + regs_of(soff), d.regs(), res_rd=("VM",), res_wr=("VM",)))
    def vst(s, op, data, voff, srd, soff, off=0, flags=""):
        assert 0 <= off < 4096
        o = f" offset:{off}" if off else ""
        return s.add(Ins(f"{op} {data}, {voff}, {srd}, {soff} offen{o} {flags}".rstrip(), "vst",
                         data.regs() + voff.regs() + srd.regs() + regs_of(soff), (), res_rd=("VM",), res_wr=("VM",),
                         data=data.regs()))
    def dma(s, voff, srd, soff, res, flags=""):
        return s.add(Ins(f"buffer_load_dwordx4 {voff}, {srd}, {soff} offen {flags} lds".replace("  ", " "), "dma",
                         voff.regs() + srd.regs() + regs_of(soff) + ["m0"], (), res_rd=("VM",), res_wr=tuple(res) + ("VM",)))
    def bar(s, res):
        return s.add(Ins("s_barrier", "bar", (), (), res_rd=tuple(res) + ("BAR",), res_wr=tuple(res) + ("BAR",)))
    def raw(s, txt, kind="salu", rd=(), wr=(), res_rd=(), res_wr=()):
        return s.add(Ins(txt, kind, rd, wr, res_rd=res_rd, res_wr=res_wr))

def first_kind(i): return i.sub[0].kind if i.sub else i.kind
def flat(i): return i.sub if i.sub else [i]
def cost(i): return sum(COST[x.kind] for x in flat(i))

def edge_lat(p, c, typ, reg):
    pk = p.sub[-1].kind if p.sub else p.kind
    ck = first_kind(c)
    if p.sub:
        for x in p.sub:
            if reg in x.wr or reg in x.res_wr: pk = x.kind
    if typ == "res":
        if reg in ("VM", "BAR"): return cost(p)
        if ck == "bar":
            if pk in ("dsw", "dsr"): return 60
            if pk == "dma": return LAT_VM
        if pk == "bar": return 20
        if pk == "dsr" and ck == "dma": return LAT_DS
        return cost(p)
    if typ == "raw":
        if pk in ("mfma", "smf"):
            if ck in ("mfma", "smf") and tuple(sorted(p.wr)) == tuple(sorted(c.srcc)) and reg not in c.ab: return 16
            return 44
        if pk == "dsr": return LAT_DS
        if pk == "vld": return LAT_VM
        if pk in VALU_KINDS:
            if ck in ("mfma", "smf", "perm"): return cost(p) + 8
            if pk == "trans": return 12
            if reg[0] == "s" or reg == "vcc":
                return 24 if ck in ("vld", "vst", "dma") else 12
            return cost(p)
        if pk == "salu" and reg == "m0": return 8
        return cost(p)
    if typ == "waw":
        if pk in ("mfma", "smf") and ck not in ("mfma", "smf"): return 44
        if pk == "dsr": return LAT_DS
        if pk == "vld": return LAT_VM
        return cost(p)
    if typ == "war":
        if pk in ("mfma", "smf") and reg in p.srcc and ck in VALU_KINDS: return 24
        if pk == "vst": return 12
        return cost(p)

def build_dag(ins):
    lastw, readers = {}, {}
    for n, i in enumerate(ins):
        i.idx = n; i.preds = {}; i.succs = []; i.cost = cost(i)
    def edge(p, c, typ, reg):
        if p is c: return
        l = edge_lat(p, c, typ, reg)
        if c.preds.get(p.idx, -1) < l: c.preds[p.idx] = l
    for i in ins:
        for (rs, ws, isres) in ((i.rd, i.wr, False), (i.res_rd, i.res_wr, True)):
            for r in rs:
                k = (isres, r)
                if k in lastw: edge(lastw[k], i, "res" if isres else "raw", r)
            for r in ws:
                k = (isres, r)
                if k in lastw: edge(lastw[k], i, "res" if isres else "waw", r)
                for q in readers.get(k, ()): edge(q, i, "res" if isres else "war", r)
            for r in rs: readers.setdefault((isres, r), []).append(i)
            for r in ws:
                lastw[(isres, r)] = i; readers[(isres, r)] = []
    for i in ins:
        for p, l in i.preds.items(): ins[p].succs.append((i.idx, l))

def schedule(ins, mode="cp", vm_gap=70, verbose=False):
    build_dag(ins)
    n = len(ins)
    cp = [0] * n
    for i in reversed(ins):
        b = i.cost
        for (s_, l) in i.succs:
            b = max(b, min(l, 300) + cp[s_])
        cp[i.idx] = b
    for i in ins:
        if mode == "cp": i.prio = -(cp[i.idx] + i.bias)
        else: i.prio = i.idx - i.bias
        i.npred = len(i.preds); i.rt = 0
    avail = [i for i in ins if i.npred == 0]
    t = 0; mf_free = 0; vm_free = 0
    out = []
    vmq = []
    ds_out = []
    idle = 0
    def is_m(i): return first_kind(i) in ("mfma", "smf") and not i.sub
    def is_vm(i): return any(x.kind in ("vld", "vst", "dma") for x in flat(i))
    def is_ds(i): return any(x.kind in ("dsr", "dsw") for x in flat(i))
    while avail:
        ds_out = [x for x in ds_out if x > t]
        def eff(i):
            e = i.rt
            if is_m(i): e = max(e, mf_free)
            if is_vm(i):
                e = max(e, vm_free)
                if len(vmq) >= VM_INFLIGHT: e = max(e, vmq[-VM_INFLIGHT])
            if is_ds(i) and len(ds_out) >= 12: e = max(e, min(ds_out))
            return e
        rdy = [i for i in avail if eff(i) <= t]
        if not rdy:
            nt = min(eff(i) for i in avail)
            idle += nt - t
            t = nt
            continue
        ms = [i for i in rdy if is_m(i)]
        if ms: pick = min(ms, key=lambda i: (i.prio, i.idx))
        else: pick = min(rdy, key=lambda i: (i.prio, i.idx))
        avail.remove(pick)
        out.append((t, pick))
        if is_m(pick): mf_free = t + 16
        if is_vm(pick):
            g = 0
            for x in flat(pick):
                if x.kind in ("vld", "dma"): g += vm_gap if "x4" in x.txt else 16
                elif x.kind == "vst": g += 32
            vm_free = t + g
            if g >= vm_gap: vmq.append(max(pick.arrive, t + 500))
        for x in flat(pick):
            if x.kind in ("dsr", "dsw"): ds_out.append(t + LAT_DS)
        for (s_, l) in pick.succs:
            c = ins[s_]
            if l == LAT_VM and pick.arrive: c.rt = max(c.rt, pick.arrive, t + 500)
            else: c.rt = max(c.rt, t + l)
            c.npred -= 1
            if c.npred == 0: avail.append(c)
        t += pick.cost
    assert len(out) == n
    return out, t, idle

def finalize(order, pre_vm=0):
    seq = []
    for i in order: seq += flat(i)
    lines = []
    lg = []
    vm = []
    hist = []
    pos = 0
    stats = {"nop": 0, "wait": 0}
    for i in seq:
        touched = i.rd | i.wr
        need_lg = None; need_vm = None
        for k, o in enumerate(lg):
            dep = bool(o.wr & touched)
            if i.kind == "bar" and ((o.res_rd | o.res_wr) & i.res_wr): dep = True
            if i.kind == "dma" and ((o.res_rd | o.res_wr) & (i.res_wr - {"VM"})): dep = True
            if dep: need_lg = len(lg) - 1 - k
        for k, o in enumerate(vm):
            dep = bool(o.wr & touched)
            if o.kind == "dma" and i.kind != "dma" and ((o.res_wr - {"VM"}) & (i.res_rd | i.res_wr)): dep = True
            if dep: need_vm = len(vm) - 1 - k
        if need_lg is not None or need_vm is not None:
            w = []
            if need_vm is not None:
                nv = min(need_vm, 63); w.append(f"vmcnt({nv})"); vm = vm[len(vm) - nv:] if nv else []
            if need_lg is not None:
                nl = min(need_lg, 15); w.append(f"lgkmcnt({nl})"); lg = lg[len(lg) - nl:] if nl else []
            lines.append("    s_waitcnt " + " ".join(w)); pos += 1; stats["wait"] += 1
        need = 0
        for (p, pp) in hist[-24:]:
            d = pos - pp - 1
            req = 0
            pk, ck = p.kind, i.kind
            isv = ck in VALU_KINDS
            if pk in ("mfma", "smf"):
                if ck in ("mfma", "smf"):
                    if p.wr & i.ab: req = 8
                    elif p.wr & set(i.srcc):
                        req = 0 if tuple(sorted(p.wr)) == tuple(sorted(i.srcc)) else 6
                elif p.wr & touched: req = 8
                if isv and (set(p.srcc) & i.wr): req = max(req, 3)
            elif pk in VALU_KINDS:
                vw = {r for r in p.wr if r[0] in "va" and r != "vcc"}
                sw = p.wr - vw
                if ck in ("mfma", "smf") and (vw & i.rd): req = 2
                if ck == "perm" and (vw & i.rd): req = 2
                if "dpp" in i.txt and (vw & i.rd): req = 2
                if ("readfirstlane" in i.txt or "readlane" in i.txt) and (vw & i.rd): req = 1
                if pk == "trans" and isv and ck != "trans" and (vw & i.rd): req = max(req, 1)
                if pk == "trans" and not isv and (vw & i.rd): req = max(req, 1)
                if sw & i.rd:
                    if isv: req = max(req, 2)
                    if ck in ("vld", "vst", "dma"): req = max(req, 5)
                    if ck == "salu": req = max(req, 1)
            elif pk == "salu":
                if "m0" in p.wr and ck == "dma": req = 1
            elif pk == "vst":
                if ("x4" in p.txt or "x3" in p.txt) and (p.data & i.wr): req = 2
            if req - d > need: need = req - d
        if need > 0:
            lines.append(f"    s_nop {need-1}"); pos += need; stats["nop"] += need
        lines.append("    " + i.txt + (f"    ; {i.tag}" if i.tag else ""))
        hist.append((i, pos)); pos += 1
        if i.kind in ("dsr", "dsw"): lg.append(i)
        if i.kind in ("vld", "vst", "dma"): vm.append(i)
    return lines, stats
```

```python
import sys, math, struct
from sched import *
import sched

NAME = "standalone__window_attn_davit__vision"
def f32bits(x): return struct.unpack("<I", struct.pack("<f", x))[0]

ROW = 3744; PIX = 416
XT = 0
HB = 59904
H_OFF = [0, 18432]; O_OFF = 36864
SM = HB + 55296
HX_OFF, OX_OFF, X0X_OFF = 0, 1536, 3072
ST = SM + 4608
DUMMY = ST + 2048
PV = DUMMY + 128
PVW = 10240
LDS_TOTAL = PV + 4 * PVW
PATCH = HB + O_OFF
SCR = XT + 9 * ROW
assert LDS_TOTAL <= 163840

def V(i, n=1): return R("v", i, n)
def A(i, n=1): return R("a", i, n)
def S(i, n=1): return R("s", i, n)

class Alloc:
    def __init__(s, start): s.p = start
    def get(s, n, al=1):
        s.p = (s.p + al - 1) // al * al
        r = V(s.p, n); s.p += n; return r
al = Alloc(0)
T0 = 0; NT = 80
al.p = NT
convA = al.get(60, 4)
WOV = al.get(32, 4)
Kr = al.get(18, 2); KX = al.get(6, 2); QX = al.get(6, 2)
Vr = al.get(24, 2)
ONES = al.get(6, 2); IDENT = al.get(2, 2)
aCV1 = [al.get(1) for _ in range(3)]; aCV2 = [al.get(1) for _ in range(3)]
aSTO = [al.get(1) for _ in range(3)]
aW128, aW64, aRD, aPV, aBCR, aSTW, aSTR, aXW128, aXW64, voffX = [al.get(1) for _ in range(10)]
aSW, aSR = al.get(1), al.get(1)
assert al.p <= 256, al.p
def T(i, n=1):
    assert i + n <= NT
    return V(T0 + i, n)

def wunit(sl, ks):
    base = (sl * 6 + ks) * 12
    out = []
    for ft in range(3):
        b = base + 4 * ft
        out.append(A(b, 4) if b < 256 else WOV[b - 256:b - 252])
    return out
SL_K, SL_V, SL_Q, SL_O = 0, 1, 2, 3
SL_COL = {SL_Q: 0, SL_K: 384, SL_V: 768}

srdX, srdDW, srdWQ, srdWO, srdOUT = S(16, 4), S(20, 4), S(24, 4), S(28, 4), S(32, 4)
sW, sXCD, sCOL, sROW, sM0, sTMP, sTMP2, sWOFF, sC, sINV, sEPS = [S(36 + i) for i in range(11)]
sOUT = [S(48 + i) for i in range(4)]
sM1, sM2, sM3, sLO = S(52, 2), S(54, 2), S(56, 2), S(58, 2)
sMX = [S(60 + 2 * i, 2) for i in range(4)]
sSO = [S(68 + i) for i in range(4)]
srdWS = S(72, 4)
sT3 = S(76, 2)

DEBUG = {}
def gen(debug=None, mode="cp"):
    P = Prog()
    pre = []
    H = Prog()
    lane, t_, g_, tmp1, tmp2, tmp3, tmp4 = T(1), T(2), T(3), T(4), T(5), T(6), T(7)
    tid = V(0)
    H.raw("s_load_dwordx2 s[16:17], s[0:1], 0", "smem", wr=["s16", "s17"])
    H.raw("s_load_dwordx2 s[20:21], s[0:1], 8", "smem", wr=["s20", "s21"])
    H.raw("s_load_dwordx2 s[24:25], s[0:1], 16", "smem", wr=["s24", "s25"])
    H.raw("s_load_dwordx2 s[28:29], s[0:1], 24", "smem", wr=["s28", "s29"])
    H.raw("s_load_dwordx2 s[32:33], s[0:1], 32", "smem", wr=["s32", "s33"])
    if debug: H.raw("s_load_dwordx2 s[72:73], s[0:1], 48", "smem", wr=["s72", "s73"])
    H.raw("s_cmp_ge_u32 s2, 256")
    H.raw("s_cbranch_scc1 L_end")
    H.v("v_lshrrev_b32", tmp1, 6, tid)
    H.v("v_and_b32", lane, 63, tid)
    H.v("v_readfirstlane_b32", sW, tmp1)
    H.s("s_and_b32", sXCD, S(2), 7, scc=True)
    H.s("s_lshr_b32", sCOL, S(2), 3, scc=True)
    H.s("s_mov_b32", srdX[2], 19267584); H.s("s_mov_b32", srdX[3], "0x20000")
    H.s("s_mul_i32", sTMP, sW, 60)
    H.s("s_min_u32", sTMP, sTMP, 170, scc=True)
    H.s("s_mul_i32", sTMP2, sCOL, 7)
    H.s("s_sub_u32", sTMP2, sTMP2, 1, scc=True)
    H.v("v_add_u32", tmp1, sTMP, lane)
    H.v("v_mul_u32_u24", tmp2, 2521, tmp1)
    H.v("v_lshrrev_b32", tmp2, 16, tmp2)
    H.v("v_mul_u32_u24", tmp3, 26, tmp2)
    H.v("v_sub_u32", tmp3, tmp1, tmp3)
    H.v("v_add_u32", tmp2, sTMP2, tmp2)
    H.v("v_cmp_gt_u32", "vcc", 24, tmp3)
    H.v("v_mov_b32", tmp4, 224)
    H.v("v_cmp_lt_u32", sT3, tmp2, tmp4)
    H.v("v_mul_u32_u24", tmp2, 384, tmp2)
    H.v("v_lshl_add_u32", tmp2, tmp3, 4, tmp2)
    H.s("s_and_b64", "vcc", "vcc", sT3, scc=True)
    H.v("v_bfrev_b32", tmp4, 2)
    H.s("s_lshl_b32", sM0, sTMP, 4, scc=True)
    H.v("v_cndmask_b32", voffX, tmp4, tmp2, "vcc")
    H.s("s_mul_i32", sROW, sXCD, 28 * 86016)
    H.s("s_sub_u32", sSO[0], sROW, 86016, scc=True)
    H.s("s_cselect_b32", sSO[0], "0x40000000", sSO[0], rdscc=True)
    H.s("s_mov_b32", "m0", sM0)
    H.raw("s_waitcnt lgkmcnt(0)")
    head_lines, _ = finalize(H.ins)

    so_i = [0]
    def nso():
        so_i[0] = (so_i[0] + 1) % 4
        return sSO[so_i[0]]
    arr = []
    def xrow(r, slot, arrive, first=False):
        P.tag = f"dma r{r}"
        P.begin_bundle()
        if first: so = sSO[0]
        else:
            so = nso()
            P.s("s_add_u32", "m0", sM0, XT + slot * ROW, scc=True)
            P.s("s_add_u32", so, sROW, (r - 1) * 86016, scc=True)
        P.dma(voffX, srdX, so, [("XT", slot)], "nt")
        P.end_bundle()
        P.ins[-1].arrive = arrive
    P.bias = 100000
    for r in range(4): xrow(r, r, 1900 + 160 * r, first=(r == 0))
    P.tag = "setup"
    P.v("v_and_b32", t_, 15, lane)
    P.v("v_lshrrev_b32", g_, 4, lane)
    P.s("s_mov_b32", srdDW[2], 3456); P.s("s_mov_b32", srdDW[3], "0x20000")
    P.s("s_mul_i32", sWOFF, sW, 96)
    d1, d6, hi = T(8), T(9), T(10)
    P.v("v_lshrrev_b32", hi, 5, lane)
    P.v("v_and_b32", tmp1, 14, lane)
    P.v("v_lshlrev_b32", tmp1, 1, tmp1)
    P.v("v_mul_u32_u24", tmp2, 384, hi)
    P.v("v_add_u32", d1, tmp1, tmp2)
    P.v("v_mul_u32_u24", tmp2, 6 * 384, hi)
    P.v("v_add_u32", d6, tmp1, tmp2)
    PAIR_TAP = [0, 3, 4, 6, 2]
    def cA(ct, p): return convA[(ct * 5 + p) * 4:(ct * 5 + p) * 4 + 4]
    for ct in range(3):
        for p in range(5):
            i = P.vld("buffer_load_dword", cA(ct, p)[3], d6 if p == 4 else d1, srdDW, sWOFF, PAIR_TAP[p] * 384 + 32 * ct)
            i.arrive = 2600
    for r in range(4, 9): xrow(r, r, 2000 + 160 * r)
    P.bias = 0
    P.tag = "touch"
    P.s("s_mov_b32", srdWQ[2], 221184); P.s("s_mov_b32", srdWQ[3], "0x20000")
    P.s("s_mov_b32", srdWO[2], 73728); P.s("s_mov_b32", srdWO[3], "0x20000")
    P.s("s_mov_b32", srdOUT[2], 19267584); P.s("s_mov_b32", srdOUT[3], "0x20000")
    tch, tdst = T(11), T(12)
    P.s("s_lshl_b32", sTMP, sCOL, 2, scc=True)
    P.s("s_add_u32", sTMP, sTMP, sW, scc=True)
    P.v("v_and_b32", tch, 15, lane)
    P.v("v_lshlrev_b32", tch, 7, tch)
    so = nso(); P.s("s_lshl_b32", so, sTMP, 11, scc=True)
    P.vld("buffer_load_dword", tdst, tch, srdWQ, so).arrive = 3400
    P.v("v_and_b32", tch, "0x380", tch)
    so = nso(); P.s("s_lshl_b32", so, sTMP, 10, scc=True)
    P.vld("buffer_load_dword", T(32), tch, srdWO, so).arrive = 3400
    for r in range(9, 16): xrow(r, r, 3500 + 210 * (r - 8))
    P.tag = "patch"
    vp = T(13)
    P.s("s_mul_i32", sTMP, sW, 52)
    P.v("v_add_u32", tmp1, sTMP, lane)
    P.v("v_mul_u32_u24", tmp2, 2521, tmp1)
    P.v("v_lshrrev_b32", tmp2, 16, tmp2)
    P.v("v_mul_u32_u24", tmp3, 26, tmp2)
    P.v("v_sub_u32", tmp3, tmp1, tmp3)
    P.v("v_cmp_lt_u32", "vcc", 2, tmp2)
    P.v("v_mov_b32", tmp4, 7 * 86016 - 3 * 384)
    P.v("v_cndmask_b32", tmp4, 0, tmp4, "vcc")
    P.v("v_subrev_u32", vp, 3, tmp2)
    P.v("v_cndmask_b32", vp, tmp2, vp, "vcc")
    P.v("v_add_u32", tmp1, sTMP2, vp)
    P.v("v_add_u32", tmp2, sTMP2, tmp2)
    P.v("v_mul_u32_u24", tmp2, 384, tmp2)
    P.v("v_lshl_add_u32", tmp2, tmp3, 4, tmp2)
    P.v("v_add_u32", tmp2, tmp2, tmp4)
    P.v("v_bfrev_b32", tmp4, 2)
    P.v("v_cmp_gt_u32", "vcc", 24, tmp3)
    P.v("v_cndmask_b32", tmp2, tmp4, tmp2, "vcc")
    P.v("v_cmp_gt_u32", "vcc", 3, vp)
    P.v("v_cndmask_b32", tmp2, tmp4, tmp2, "vcc")
    P.v("v_cmp_le_i32", "vcc", 0, tmp1)
    P.v("v_cndmask_b32", vp, tmp4, tmp2, "vcc")
    P.s("s_lshl_b32", sTMP, sTMP, 4, scc=True)
    for r in range(3):
        P.begin_bundle()
        so = nso()
        P.s("s_add_u32", "m0", sTMP, PATCH + r * ROW, scc=True)
        P.s("s_add_u32", so, sROW, (20 + r - 1) * 86016, scc=True)
        P.dma(vp, srdX, so, [("PATCH",)], "nt")
        P.end_bundle()
        P.ins[-1].arrive = 5100 + 60 * r
    P.tag = "addr"
    P.s("s_mov_b32", sC, hex(f32bits(48 ** -0.5 * math.log2(math.e))))
    P.s("s_mov_b32", sINV, hex(f32bits(1.0 / 192)))
    P.s("s_mov_b32", sEPS, hex(f32bits(1e-5)))
    for k, (m, val) in enumerate(((sM1, 0x22222222), (sM2, 0x44444444), (sM3, 0x88888888))):
        P.s("s_mov_b32", m[0], hex(val)); P.s("s_mov_b32", m[1], hex(val))
    P.s("s_mov_b32", sLO[0], -1); P.s("s_mov_b32", sLO[1], 0)
    for k in range(4):
        P.s("s_mov_b32", sMX[k][0], hex(0x11111111 << k)); P.s("s_mov_b32", sMX[k][1], hex(0x11111111 << k))
    for k in range(4): P.v("v_mov_b32", ONES[k], "0x3f803f80")
    P.v("v_cmp_gt_u32", "vcc", 16, lane)
    P.v("v_cndmask_b32", ONES[4], 0, ONES[0], "vcc")
    P.v("v_mov_b32", ONES[5], ONES[4])
    mk = T(14, 4); hm = T(18)
    P.v("v_and_b32", tmp1, 1, t_)
    P.v("v_lshlrev_b32", tmp1, 4, tmp1)
    P.v("v_mov_b32", hm, "0xffff")
    P.v("v_lshlrev_b32", hm, tmp1, hm)
    P.v("v_and_b32", tmp1, 1, g_)
    P.v("v_lshlrev_b32", tmp1, 2, tmp1)
    P.v("v_lshrrev_b32", tmp2, 1, t_)
    P.v("v_sub_u32", tmp2, tmp2, tmp1)
    for j in range(4):
        P.v("v_cmp_eq_u32", "vcc", j, tmp2)
        P.v("v_cndmask_b32", mk[j], 0, hm, "vcc")
    P.v("v_lshlrev_b32", tmp1, 1, g_)
    P.v("v_lshrrev_b32", tmp2, 1, t_)
    P.v("v_sub_u32", tmp2, tmp2, tmp1)
    P.v("v_and_b32", tmp3, hm, ONES[0])
    for j in range(2):
        P.v("v_cmp_eq_u32", "vcc", j, tmp2)
        P.v("v_cndmask_b32", IDENT[j], 0, tmp3, "vcc")
    P.tag = "convA"
    for ct in range(3):
        for p in range(5):
            f = cA(ct, p)
            if p == 2: P.v("v_cndmask_b32", f[3], f[3], ONES[0], sLO)
            for j in range(4): P.v("v_and_b32", f[j], f[3], mk[j])
    P.tag = "addr"
    u_, oc, sl_ = T(19), T(20), T(21)
    cvb, stb = T(22), T(23)
    P.v("v_add_u32", u_, 4, t_)
    P.v("v_bfe_u32", oc, u_, 3, 1)
    P.v("v_and_b32", sl_, 7, u_)
    P.v("v_and_b32", tmp1, 1, g_)
    P.v("v_lshlrev_b32", tmp1, 4, tmp1)
    P.v("v_add_u32", cvb, sWOFF, tmp1)
    P.s("s_mul_i32", sTMP, sCOL, 7 * 384)
    P.s("s_add_u32", sTMP, sTMP, sWOFF, scc=True)
    P.v("v_lshlrev_b32", tmp1, 3, g_)
    P.v("v_add_u32", stb, sTMP, tmp1)
    h1, h2 = T(24), T(25)
    P.v("v_mul_u32_u24", h1, PIX, hi)
    P.v("v_mul_u32_u24", h2, 2 * ROW, hi)
    P.v("v_cmp_eq_u32", sT3, 7, sl_)
    for j in range(3):
        P.v("v_add_u32", tmp1, 2 * j, oc)
        P.v("v_add_u32", tmp2, 1, tmp1)
        P.v("v_cndmask_b32", tmp2, sl_, tmp2, sT3)
        P.v("v_cndmask_b32", tmp1, tmp1, 6, sT3)
        P.v("v_mul_u32_u24", tmp3, ROW, tmp1)
        P.v("v_mul_u32_u24", tmp4, PIX, tmp2)
        P.v("v_add3_u32", tmp3, tmp3, tmp4, cvb)
        P.v("v_add_u32", aCV1[j], tmp3, h1)
        P.v("v_add_u32", aCV2[j], tmp3, h2)
        P.v("v_mul_u32_u24", tmp3, 86016, tmp1)
        P.v("v_mul_u32_u24", tmp4, 384, tmp2)
        P.v("v_add3_u32", aSTO[j], tmp3, tmp4, stb)
    for k in range(4):
        P.s("s_add_u32", sOUT[k], sROW, k * 7 * 86016, scc=True)
    aCX1, aCX2 = T(64), T(65)
    P.v("v_and_b32", tmp1, 3, lane)
    P.v("v_and_b32", tmp2, 1, lane)
    P.v("v_mul_u32_u24", tmp3, 7 * ROW, tmp2)
    P.v("v_add_u32", tmp3, XT + 6 * ROW, tmp3)
    P.v("v_mul_u32_u24", tmp4, 3 * PIX, tmp2)
    P.v("v_add_u32", tmp4, PATCH, tmp4)
    P.v("v_cmp_lt_u32", "vcc", 1, tmp1)
    P.v("v_cndmask_b32", tmp3, tmp3, tmp4, "vcc")
    P.v("v_add3_u32", aCX1, tmp3, cvb, h1)
    P.v("v_add3_u32", aCX2, tmp3, cvb, h2)
    P.v("v_lshlrev_b32", tmp1, 4, lane)
    P.v("v_add_u32", aRD, HB, tmp1)
    P.s("s_lshl_b32", sTMP, sW, 10, scc=True)
    P.v("v_add_u32", aW128, sTMP, aRD)
    P.s("s_lshr_b32", sTMP, sW, 1, scc=True)
    P.s("s_add_u32", sTMP, sTMP, 4, scc=True)
    P.s("s_and_b32", sTMP2, sW, 1, scc=True)
    P.s("s_lshl_b32", sTMP2, sTMP2, 3, scc=True)
    P.s("s_lshl_b32", sT3[0], sTMP, 10, scc=True)
    P.s("s_add_u32", sT3[0], sT3[0], sTMP2, scc=True)
    P.v("v_add_u32", aW64, sT3[0], aRD)
    P.s("s_mul_i32", sT3[1], sW, PVW)
    P.s("s_add_u32", sT3[1], sT3[1], PV, scc=True)
    P.v("v_add_u32", aPV, sT3[1], tmp1)
    P.v("v_lshlrev_b32", tmp2, 4, t_)
    P.v("v_add_u32", aBCR, sT3[1], tmp2)
    aXRD = T(66)
    P.v("v_and_b32", tmp2, 3, lane)
    P.v("v_lshl_add_u32", tmp2, g_, 2, tmp2)
    P.v("v_lshlrev_b32", tmp2, 4, tmp2)
    P.v("v_add_u32", aXRD, SM, tmp2)
    P.s("s_lshl_b32", sT3[0], sW, 8, scc=True)
    P.v("v_add_u32", aXW128, sT3[0], aXRD)
    P.s("s_lshl_b32", sT3[0], sTMP, 8, scc=True)
    P.s("s_add_u32", sT3[0], sT3[0], sTMP2, scc=True)
    P.v("v_add_u32", aXW64, sT3[0], aXRD)
    P.v("v_lshlrev_b32", tmp2, 7, t_)
    P.v("v_lshl_add_u32", tmp3, g_, 5, tmp2)
    P.v("v_add_u32", aSTR, ST, tmp3)
    P.s("s_lshl_b32", sT3[0], sW, 3, scc=True)
    P.s("s_add_u32", sT3[0], sT3[0], ST, scc=True)
    P.v("v_add_u32", tmp2, sT3[0], tmp2)
    P.v("v_lshrrev_b32", tmp3, 2, t_)
    P.v("v_cmp_eq_u32", "vcc", tmp3, g_)
    P.v("v_mov_b32", tmp3, DUMMY)
    P.v("v_cndmask_b32", aSTW, tmp3, tmp2, "vcc")
    wv = QX_TMP = None
    wo4 = T(68, 4)
    rowr = [T(26), T(27), T(28)]; subr = [T(29), T(30), T(31)]
    def wvoffs(stride, lane_r, ta, tb, tc):
        for j in range(3):
            P.v("v_add_u32", ta, 64 * j, lane_r)
            P.v("v_mul_u32_u24", tb, 43691, ta)
            P.v("v_lshrrev_b32", tb, 18, tb)
            P.v("v_mul_u32_u24", tc, 6, tb)
            P.v("v_sub_u32", ta, ta, tc)
            P.v("v_mul_u32_u24", tc, stride, tb)
            P.v("v_lshl_add_u32", wo4[j], ta, 4, tc)
            if j == 1:
                P.v("v_cmp_lt_u32", "vcc", 15, tb)
                P.v("v_add_u32", tc, 32 * stride, wo4[1])
                P.v("v_cndmask_b32", wo4[3], wo4[1], tc, "vcc")
    wvoffs(1152, lane, tmp2, tmp3, tmp4)
    P.s("s_mul_i32", sT3[0], sW, 3072)
    P.s("s_add_u32", sT3[0], sT3[0], SCR, scc=True)
    P.v("v_add_u32", aSW, sT3[0], tmp1)
    P.v("v_lshrrev_b32", tmp2, 2, lane)
    P.v("v_mul_u32_u24", tmp2, 96, tmp2)
    P.v("v_and_b32", tmp3, 3, lane)
    P.v("v_lshl_add_u32", tmp2, tmp3, 3, tmp2)
    P.v("v_add_u32", aSR, sT3[0], tmp2)

    wt = [5250]
    def wload(sl):
        P.tag = f"wload{sl}"
        stride = 384 if sl == SL_O else 1152
        srd = srdWO if sl == SL_O else srdWQ
        col = 0 if sl == SL_O else SL_COL[sl]
        for ks in range(6):
            u = wunit(sl, ks)
            row0 = 48 * ks if ks < 4 else 96 * (ks - 4) + 32
            so = nso(); P.s("s_add_u32", so, sWOFF, col + row0 * stride, scc=True)
            for j in range(3):
                if ks >= 4 and j == 2:
                    so = nso(); P.s("s_add_u32", so, sWOFF, col + (row0 + 32) * stride, scc=True)
                vo = wo4[3] if (ks >= 4 and j == 1) else wo4[j]
                i = P.vld("buffer_load_dwordx4", u[j], vo, srd, so)
                wt[0] += 78; i.arrive = wt[0]
    def wtrans(sl):
        P.tag = f"wtr{sl}"
        for ks in range(6):
            u = wunit(sl, ks)
            for j in range(3): P.dsw("ds_write_b128", aSW, u[j], 1024 * j, res=[("SCR",)])
            for ft in range(3):
                for hb in range(2):
                    P.dsr("ds_read_b64_tr_b16", u[ft][2 * hb:2 * hb + 2], aSR, hb * 1536 + 32 * ft, res=[("SCR",)])
    wload(SL_K); wload(SL_V)

    def dump(name, regs):
        if not debug or name not in debug: return
        P.tag = "dump"
        base = DEBUG.setdefault("_next", 0)
        n = sum(r.n for r in regs)
        DEBUG[name] = (base, n); DEBUG["_next"] = base + n
        k = 0
        for r in regs:
            for q in range(r.n):
                so = nso(); P.s("s_mov_b32", so, (base + k) * 262144)
                P.vst("buffer_store_dword", r[q], dbgv, srdWS, so); k += 1
    if debug:
        dbgv = V(al.p); assert al.p < 256
        P.s("s_mov_b32", srdWS[2], "0x10000000"); P.s("s_mov_b32", srdWS[3], "0x20000")
        P.s("s_lshl_b32", sT3[0], S(2), 8, scc=True)
        P.v("v_add_u32", dbgv, sT3[0], tid)
        P.v("v_lshlrev_b32", dbgv, 2, dbgv)

    class Pool:
        def __init__(s, regs): s.r = regs; s.k = 0
        def get(s):
            x = s.r[s.k % len(s.r)]; s.k += 1; return x
    def quads(base, n): return [T(base + 4 * k, 4) for k in range(n)]
    PAIR_OFF = [0, ROW, ROW + PIX, 2 * ROW, 2 * PIX]

    def x0_offs(buf, tt):
        k = buf * 3 + tt
        return k * 1024, 6144 + (k >> 1) * 1024 + 8 * (k & 1)

    def conv_tile(win, tt, acc, fr, xp, sa, stat_tile):
        P.tag = f"conv{win}.{tt}"
        if win == "X":
            a1, a2, base = aCX1, aCX2, 0
            res = [("XT", r) for r in (6, 7, 8, 13, 14, 15)] + [("PATCH",)]
        else:
            a1, a2, base = aCV1[tt], aCV2[tt], (win & 1) * 7 * ROW
            r0 = (win & 1) * 7
            res = [("XT", r0 + r) for r in sorted(set(list(range(2 * tt, 2 * tt + 4)) + [6, 7, 8]))]
        for p in range(5):
            for ct in range(3):
                f = fr.get()
                P.dsr("ds_read_b128", f, a2 if p == 4 else a1, base + PAIR_OFF[p] + 32 * ct, res=res)
                d = acc[4 * ct:4 * ct + 4]
                P.mfma32(d, cA(ct, p), f, d if p else 0)
        P.tag = f"stat{win}.{tt}"
        for k in range(6): P.v("v_cvt_pk_bf16_f32", xp[k], acc[2 * k], acc[2 * k + 1])
        if win == "X":
            P.dsw("ds_write_b128", aXW128, xp[0:4], X0X_OFF, res=[("X0X",)])
            P.dsw("ds_write_b64", aXW64, xp[4:6], X0X_OFF, res=[("X0X",)])
        else:
            o1, o2 = x0_offs(win & 1, tt)
            P.dsw("ds_write_b128", aPV, xp[0:4], o1, res=[("X0", win & 1, tt)])
            P.dsw("ds_write_b64", aPV, xp[4:6], o2, res=[("X0", win & 1, tt)])
        sm, gr = sa[0:4], sa[4:8]
        P.mfma32(gr, xp[0:4], xp[0:4], 0)
        P.mfma32(sm, ONES[0:4], xp[0:4], 0)
        P.mfma16(gr, xp[4:6], xp[4:6], gr)
        P.mfma16(sm, ONES[0:2], xp[4:6], sm)
        P.v("v_cndmask_b32", gr[0], gr[0], gr[1], sM1)
        P.v("v_cndmask_b32", gr[0], gr[0], gr[2], sM2)
        P.v("v_cndmask_b32", sm[1], gr[0], gr[3], sM3)
        P.dsw("ds_write_b64", aSTW, sm[0:2], 32 * stat_tile, res=[("ST",)])

    def norm(win, tiles, tmp):
        P.tag = f"fin{win}"
        P.dsr("ds_read_b128", tmp[0:4], aSTR, 0, res=[("ST",)])
        P.dsr("ds_read_b128", tmp[4:8], aSTR, 16, res=[("ST",)])
        P.v("v_add_f32", tmp[0], tmp[0], tmp[2]); P.v("v_add_f32", tmp[1], tmp[1], tmp[3])
        P.v("v_add_f32", tmp[4], tmp[4], tmp[6]); P.v("v_add_f32", tmp[5], tmp[5], tmp[7])
        P.v("v_add_f32", tmp[0], tmp[0], tmp[4]); P.v("v_add_f32", tmp[1], tmp[1], tmp[5])
        P.v("v_mul_f32", tmp[2], sINV, tmp[0])
        P.v("v_mul_f32", tmp[1], sINV, tmp[1])
        P.v("v_fma_f32", tmp[1], ("-%s", tmp[2]), tmp[2], tmp[1])
        P.v("v_max_f32", tmp[1], 0, tmp[1])
        P.v("v_add_f32", tmp[1], sEPS, tmp[1])
        P.v("v_rsq_f32", tmp[0], tmp[1])
        P.v("v_mul_f32", tmp[1], ("-%s", tmp[2]), tmp[0], mods="")
        P.dsw("ds_write_b64", aPV, tmp[0:2], 9216, res=[("BC",)])
        for k, (acc, st_, kind, tt) in enumerate(tiles):
            P.dsr("ds_read_b64", tmp[2 * k:2 * k + 2], aBCR, 9216 + 256 * st_, res=[("BC",)])
        for k, (acc, st_, kind, tt) in enumerate(tiles):
            P.tag = f"norm{kind}.{tt}"
            for q in range(12): P.v("v_fma_f32", acc[q], acc[q], tmp[2 * k], tmp[2 * k + 1])
            for q in range(6): P.v("v_cvt_pk_bf16_f32", acc[q], acc[2 * q], acc[2 * q + 1])
            if kind == "X":
                P.dsw("ds_write_b128", aXW128, acc[0:4], HX_OFF, res=[("HX",)])
                P.dsw("ds_write_b64", aXW64, acc[4:6], HX_OFF, res=[("HX",)])
            else:
                o = H_OFF[kind & 1] + tt * 6144
                P.dsw("ds_write_b128", aW128, acc[0:4], o, res=[("H", kind & 1)])
                P.dsw("ds_write_b64", aW64, acc[4:6], o, res=[("H", kind & 1)])

    def hfrag(f, win, tt, ks):
        if win == "X": P.dsr("ds_read_b128", f, aXRD, HX_OFF + 256 * ks, res=[("HX",)])
        else: P.dsr("ds_read_b128", f, aRD, H_OFF[win & 1] + tt * 6144 + 1024 * ks, res=[("H", win & 1)])

    def Kdst(win, tt): return KX if win == "X" else Kr[6 * tt:6 * tt + 6]
    def Vdst(win, tt, dt):
        k = 3 if win == "X" else tt
        return Vr[(k >> 1) * 12 + dt * 4 + (k & 1) * 2:(k >> 1) * 12 + dt * 4 + (k & 1) * 2 + 2]

    def gemm_tile(win, tt, parts, ga, fr):
        P.tag = f"{parts}{win}.{tt}"
        accs = {(p, dt): ga.get() for p in parts for dt in range(3)}
        for ks in range(6):
            f = fr.get(); hfrag(f, win, tt, ks)
            for p in parts:
                w = wunit({"K": SL_K, "V": SL_V, "Q": SL_Q}[p], ks)
                for dt in range(3):
                    d = accs[(p, dt)]
                    if p == "V": P.mfma32(d, f, w[dt], d if ks else 0)
                    else: P.mfma32(d, w[dt], f, d if ks else 0)
        for p in parts:
            for dt in range(3):
                d = accs[(p, dt)]
                dst = Vdst(win, tt, dt) if p == "V" else (Kdst(win, tt) if p == "K" else QX)[2 * dt:2 * dt + 2]
                P.v("v_cvt_pk_bf16_f32", dst[0], d[0], d[1])
                P.v("v_cvt_pk_bf16_f32", dst[1], d[2], d[3])

    def attn_tile(win, qt, qa, sreg, oa, fr):
        P.tag = f"Q{win}.{qt}"
        if qt == "X": qp = QX
        else:
            for ks in range(6):
                f = fr.get(); hfrag(f, win, qt, ks)
                w = wunit(SL_Q, ks)
                for dt in range(3):
                    d = qa[4 * dt:4 * dt + 4]
                    P.mfma32(d, w[dt], f, d if ks else 0)
            for q in range(6): P.v("v_cvt_pk_bf16_f32", qa[q], qa[2 * q], qa[2 * q + 1])
            qp = qa[0:6]
        P.tag = f"S{win}.{qt}"
        ks_ = [Kr[0:6], Kr[6:12], Kr[12:18], KX]
        for kt in range(4): P.mfma32(sreg[4 * kt:4 * kt + 4], ks_[kt][0:4], qp[0:4], 0)
        for kt in range(4): P.mfma16(sreg[4 * kt:4 * kt + 4], ks_[kt][4:6], qp[4:6], sreg[4 * kt:4 * kt + 4])
        P.tag = f"sm{win}.{qt}"
        sx = sreg[12 + win]
        fre = [sreg[12 + k] for k in range(4) if k != win]
        m, t2 = fre[0], fre[1]
        vals = [sreg[k] for k in range(12)] + [sx]
        P.v("v_max3_f32", m, vals[0], vals[1], vals[12])
        P.v("v_max3_f32", t2, vals[2], vals[3], vals[4])
        P.v("v_max3_f32", m, m, vals[5], vals[6])
        P.v("v_max3_f32", t2, t2, vals[7], vals[8])
        P.v("v_max3_f32", m, m, vals[9], vals[10])
        P.v("v_max3_f32", m, m, t2, vals[11])
        P.v("v_mov_b32", t2, m)
        P.swap("v_permlane32_swap_b32", m, t2)
        P.v("v_max_f32", m, m, t2)
        P.v("v_mov_b32", t2, m)
        P.swap("v_permlane16_swap_b32", m, t2)
        P.v("v_max_f32", m, m, t2)
        P.v("v_mul_f32", m, sC, m)
        for x in vals: P.v("v_fma_f32", x, x, sC, ("-%s", m))
        for x in vals: P.v("v_exp_f32", x, x)
        for q in range(6): P.v("v_cvt_pk_bf16_f32", sreg[q], sreg[2 * q], sreg[2 * q + 1])
        if win & 1: P.v("v_cvt_pk_bf16_f32", sreg[6 + (win >> 1)], 0, sx)
        else: P.v("v_cvt_pk_bf16_f32", sreg[6 + (win >> 1)], sx, 0)
        P.v("v_mov_b32", sreg[7 - (win >> 1)], 0)
        P.tag = f"PV{win}.{qt}"
        pa, pb = sreg[0:4], sreg[4:8]
        ls = oa[12:16]
        P.mfma32(ls, ONES[0:4], pa, 0)
        for dt in range(3): P.mfma32(oa[4 * dt:4 * dt + 4], Vr[4 * dt:4 * dt + 4], pa, 0)
        P.mfma32(ls, ONES[2:6], pb, ls)
        for dt in range(3): P.mfma32(oa[4 * dt:4 * dt + 4], Vr[12 + 4 * dt:16 + 4 * dt], pb, oa[4 * dt:4 * dt + 4])
        P.v("v_rcp_f32", ls[0], ls[0])
        for q in range(12): P.v("v_mul_f32", oa[q], oa[q], ls[0])
        for q in range(6): P.v("v_cvt_pk_bf16_f32", oa[q], oa[2 * q], oa[2 * q + 1])
        if qt == "X":
            P.begin_bundle()
            P.s("s_mov_b64", "exec", sMX[win])
            P.dsw("ds_write_b128", aXW128, oa[0:4], OX_OFF, res=[("OX",)])
            P.dsw("ds_write_b64", aXW64, oa[4:6], OX_OFF, res=[("OX",)])
            P.s("s_mov_b64", "exec", -1)
            P.end_bundle()
        else:
            o = O_OFF + qt * 6144
            P.dsw("ds_write_b128", aW128, oa[0:4], o, res=[("O",)])
            P.dsw("ds_write_b64", aW64, oa[4:6], o, res=[("O",)])

    def proj_tile(win, tt, acc, xin, fr, axrd=None, astx=None):
        P.tag = f"proj{win}.{tt}"
        if win == "X":
            P.dsr("ds_read_b128", xin[0:4], aXW128, X0X_OFF, res=[("X0X",)])
            P.dsr("ds_read_b64", xin[4:6], aXW64, X0X_OFF, res=[("X0X",)])
        else:
            o1, o2 = x0_offs(win & 1, tt)
            P.dsr("ds_read_b128", xin[0:4], aPV, o1, res=[("X0", win & 1, tt)])
            P.dsr("ds_read_b64", xin[4:6], aPV, o2, res=[("X0", win & 1, tt)])
        for ct in range(3): P.mfma16(acc[4 * ct:4 * ct + 4], IDENT, xin[2 * ct:2 * ct + 2], 0)
        for ks in range(6):
            f = fr.get()
            if win == "X": P.dsr("ds_read_b128", f, axrd, OX_OFF + 256 * ks, res=[("OX",)])
            else: P.dsr("ds_read_b128", f, aRD, O_OFF + tt * 6144 + 1024 * ks, res=[("O",)])
            w = wunit(SL_O, ks)
            for ct in range(3):
                d = acc[4 * ct:4 * ct + 4]
                P.mfma32(d, w[ct], f, d)
        for q in range(6): P.v("v_cvt_pk_bf16_f32", acc[q], acc[2 * q], acc[2 * q + 1])
        for ct in range(3):
            if win == "X": P.vst("buffer_store_dwordx2", acc[2 * ct:2 * ct + 2], astx, srdOUT, sOUT[0], 32 * ct)
            else: P.vst("buffer_store_dwordx2", acc[2 * ct:2 * ct + 2], aSTO[tt], srdOUT, sOUT[win], 32 * ct)

    KVfree = lambda i, n: V(Kr.i + i, n)
    CA = [T(12 * k, 12) for k in range(3)]
    P.tag = "B0"; P.bar([("XT", r) for r in range(9)])
    acc0 = [KVfree(12 * k, 12) for k in range(3)]
    fr = Pool(quads(36, 4)); xps = Pool([T(52, 6), T(58, 6)]); sas = Pool([KVfree(36, 8), KVfree(44, 8)])
    for tt in range(3): conv_tile(0, tt, acc0[tt], fr, xps.get(), sas.get(), tt)
    dump("x0_0", acc0)
    P.tag = "B1"; P.bar([("ST",)])
    norm(0, [(acc0[tt], tt, 0, tt) for tt in range(3)], T(72, 8))
    P.tag = "B2"; P.bar([("H", 0), ("ST",), ("PATCH",)] + [("XT", r) for r in range(9, 16)])
    accX = KVfree(0, 12)
    sas = Pool([KVfree(12, 8), KVfree(20, 8)])
    for tt in range(3): conv_tile(1, tt, CA[tt], fr, xps.get(), sas.get(), tt)
    conv_tile("X", 0, accX, fr, xps.get(), sas.get(), 3)
    dump("x0_X", [accX])
    P.tag = "B3"; P.bar([("ST",), ("PATCH",), ("O",), ("SCR",)] + [("XT", r) for r in range(16)])
    wtrans(SL_K)
    norm("1X", [(accX, 3, "X", 0)] + [(CA[tt], tt, 1, tt) for tt in range(3)], T(72, 8))
    for r in range(9): xrow(14 + r, r, wt[0] + 300 + 80 * r)
    wt[0] += 900
    wload(SL_Q)
    wtrans(SL_V)
    P.tag = "wvo"
    lane2 = T(0)
    P.v("v_subrev_u32", lane2, HB, aRD)
    P.v("v_lshrrev_b32", lane2, 4, lane2)
    wvoffs(384, lane2, T(1), T(2), T(3))
    wload(SL_O)
    GA = lambda: Pool(quads(36, 7))
    FR = lambda: Pool(quads(64, 2))
    ga = Pool(quads(36, 7)); fr = Pool(quads(72, 2))
    for tt in range(3): gemm_tile(0, tt, "KV", ga, fr)
    P.tag = "B4"; P.bar([("H", 1), ("HX",), ("ST",)])
    wtrans(SL_Q)
    ga = Pool(quads(0, 9))
    gemm_tile("X", 0, "KVQ", ga, fr)
    P.tag = "vx"
    P.v("v_cmp_gt_u32", "vcc", HB + 256, aRD)
    for dt in range(3):
        for k in range(2):
            r = Vdst("X", 0, dt)[k]; P.v("v_cndmask_b32", r, 0, r, "vcc")
    dump("kv0", [Kr, KX, QX, Vr])
    wtrans(SL_O)

    def P2(win, first=False):
        qas = Pool([T(0, 12), T(12, 12)]); ss = Pool([T(24, 16), T(40, 16)]); oas = Pool([T(56, 16)])
        fr = Pool([T(72, 4), T(76, 4)])
        for qt in ("X", 0, 1, 2):
            attn_tile(win, qt, qas.get() if qt != "X" else None, ss.get(), oas.get(), fr)

    def P3(win, cw):
        pacc = Pool([T(36, 12), T(48, 12)]); xin = Pool([Kr[12:18]]); fr = Pool([T(68, 4), T(72, 4), T(76, 4)])
        cfr = Pool([KVfree(0, 4), KVfree(4, 4), KVfree(8, 4)])
        cxp = Pool([Vr[0:6], Vr[6:12]])
        for tt in range(3):
            proj_tile(win, tt, pacc.get(), xin.get(), fr)
        if cw is not None:
            sas = Pool([T(60, 8)])
            for tt in range(3): conv_tile(cw, tt, CA[tt], cfr, cxp.get(), sas.get(), tt)

    def P1(win, nw):
        if nw is not None: norm(nw, [(CA[tt], tt, nw, tt) for tt in range(3)], T(72, 8))
        ga = Pool(quads(36, 7)); fr = Pool(quads(64, 2))
        for tt in range(3): gemm_tile(win, tt, "KV", ga, fr)

    P2(0, True)
    P.tag = "B5"; P.bar([("O",), ("SCR",), ("H", 0)] + [("XT", r) for r in range(16)])
    for r in range(9, 16): xrow(14 + r, r, 0)
    P3(0, 2)
    P.tag = "B6"; P.bar([("ST",), ("O",)])
    P1(1, 2); P2(1)
    P.tag = "B7"; P.bar([("O",), ("H", 0), ("H", 1), ("ST",)] + [("XT", r) for r in range(9, 16)])
    P3(1, 3)
    P.tag = "B8"; P.bar([("ST",), ("O",)])
    P1(2, 3); P2(2)
    P.tag = "B9"; P.bar([("O",), ("H", 1)])
    P3(2, None)
    P.tag = "B10"; P.bar([("O",)])
    P1(3, None); P2(3)
    P.tag = "xaddr"
    axrd, astx, e1, e2 = convA[0], convA[1], convA[2], convA[3]
    P.s("s_lshl_b32", sT3[0], sW, 8, scc=True)
    P.v("v_subrev_u32", axrd, sT3[0], aXW128)
    P.v("v_subrev_u32", e1, HB, aRD)
    P.v("v_bfe_u32", e2, e1, 4, 2)
    P.v("v_mul_u32_u24", e2, 7 * 86016, e2)
    P.v("v_lshrrev_b32", e1, 8, e1)
    P.v("v_lshl_add_u32", e1, e1, 3, e2)
    P.s("s_mul_i32", sTMP, sCOL, 7 * 384)
    P.s("s_add_u32", sTMP, sTMP, sWOFF, scc=True)
    P.s("s_add_u32", sTMP, sTMP, 6 * 86016, scc=True)
    P.v("v_add_u32", astx, sTMP, e1)
    P.tag = "B11"; P.bar([("O",), ("OX",)])
    P3(3, None)
    proj_tile("X", 0, T(0, 12), T(12, 6), Pool([T(20, 4), T(24, 4), T(28, 4)]), axrd, astx)
    return head_lines, P

def emit(path, debug=None, mode="cp", sched_on=True):
    head, P = gen(debug, mode)
    if sched_on:
        out, total, idle = schedule(P.ins, mode)
        order = [i for _, i in out]
        marks = [(t, i.tag) for t, i in out if i.kind == "bar"]
        print("sim total", total, "idle", idle, marks)
    else:
        order = P.ins
    lines, stats = finalize(order)
    cnt = {}
    for i in order:
        for x in flat(i): cnt[x.kind] = cnt.get(x.kind, 0) + 1
    print(cnt, stats)
    src = open("cdna_kernels/" + NAME + ".s.ref").read().split("\n")
    hdr = [l for l in src if l.startswith(";") and "@launch" not in l]
    txt = "\n".join(hdr) + f"\n; @launch grid=(256,1,1) block=(256,1,1) lds={LDS_TOTAL}\n"
    txt += f""".amdgcn_target "amdgcn-amd-amdhsa--gfx950"
.text
.globl {NAME}_kernel
.p2align 8
.type {NAME}_kernel,@function
{NAME}_kernel:
""" + "\n".join(head) + "\n" + "\n".join(lines) + f"""
L_end:
    s_endpgm
.section .rodata,"a"
.p2align 6
.amdhsa_kernel {NAME}_kernel
  .amdhsa_next_free_vgpr 512
  .amdhsa_next_free_sgpr 96
  .amdhsa_accum_offset 256
  .amdhsa_group_segment_fixed_size 0
  .amdhsa_kernarg_size 56
  .amdhsa_user_sgpr_count 2
  .amdhsa_user_sgpr_kernarg_segment_ptr 1
  .amdhsa_system_sgpr_workgroup_id_x 1
.end_amdhsa_kernel
"""
    open(path, "w").write(txt)

if __name__ == "__main__":
    import argparse
    ap = argparse.ArgumentParser()
    ap.add_argument("-o", default="cdna_kernels/" + NAME + ".s")
    ap.add_argument("--debug", default="")
    ap.add_argument("--mode", default="cp")
    ap.add_argument("--nosched", action="store_true")
    a = ap.parse_args()
    emit(a.o, a.debug.split(",") if a.debug else None, a.mode, not a.nosched)
    print(DEBUG)
```

```python
import heapq

class R:
    __slots__ = ("f", "i", "n")
    def __init__(s, f, i, n=1): s.f, s.i, s.n = f, i, n
    def __getitem__(s, k):
        if isinstance(k, slice):
            a = k.start or 0; b = k.stop if k.stop is not None else s.n
            assert 0 <= a < b <= s.n, (s, k)
            return R(s.f, s.i + a, b - a)
        assert 0 <= k < s.n, (s, k)
        return R(s.f, s.i + k, 1)
    def __str__(s):
        return f"{s.f}{s.i}" if s.n == 1 else f"{s.f}[{s.i}:{s.i+s.n-1}]"
    __repr__ = __str__
    def regs(s): return [f"{s.f}{s.i+k}" for k in range(s.n)]

def regs_of(x):
    if isinstance(x, R): return x.regs()
    if isinstance(x, str):
        if x in ("vcc", "exec", "m0", "scc"): return [x]
    return []

class Ins:
    __slots__ = ("txt", "kind", "rd", "wr", "res_rd", "res_wr", "srcc", "ab", "tag", "sub", "idx", "prio",
                 "preds", "succs", "npred", "rt", "cost", "data", "bias", "arrive")
    def __init__(s, txt, kind, rd=(), wr=(), res_rd=(), res_wr=(), srcc=(), ab=(), tag="", sub=None, data=()):
        s.txt, s.kind = txt, kind
        s.rd, s.wr = set(rd), set(wr)
        s.res_rd, s.res_wr = set(res_rd), set(res_wr)
        s.srcc, s.ab = tuple(srcc), set(ab)
        s.tag, s.sub = tag, sub
        s.data = set(data)
        s.bias = 0
        s.arrive = 0

VALU_KINDS = ("valu", "trans", "perm")
COST = {"mfma": 8, "valu": 4, "trans": 8, "perm": 8, "dsr": 4, "dsw": 4, "vld": 4, "vst": 4, "dma": 4,
        "salu": 4, "bar": 8, "smem": 4, "smf": 12}
LAT_DS = 110
LAT_VM = 2500
SYNC_DIST = [150]
VM_INFLIGHT = 12

class Prog:
    def __init__(s):
        s.ins = []
        s.tag = ""
        s.bias = 0
        s._bundle = None
    def add(s, i):
        i.tag = s.tag; i.bias = s.bias
        if s._bundle is not None: s._bundle.append(i)
        else: s.ins.append(i)
        return i
    def begin_bundle(s): s._bundle = []
    def end_bundle(s):
        sub = s._bundle; s._bundle = None
        b = Ins("", "bundle", sub=sub)
        written = set()
        for i in sub:
            b.rd |= i.rd; b.wr |= i.wr; b.res_rd |= i.res_rd; b.res_wr |= i.res_wr
        b.rd.discard("exec"); b.wr.discard("exec")
        b.tag = s.tag; b.bias = s.bias
        s.ins.append(b)
    def mfma(s, op, d, a, b, c):
        rd = regs_of(a) + regs_of(b) + regs_of(c)
        return s.add(Ins(f"{op} {d}, {a}, {b}, {c}", "mfma", rd, d.regs(), srcc=regs_of(c), ab=regs_of(a) + regs_of(b)))
    def mfma32(s, d, a, b, c):
        assert d.n == 4 and a.n == 4 and b.n == 4
        return s.mfma("v_mfma_f32_16x16x32_bf16", d, a, b, c)
    def mfma16(s, d, a, b, c):
        assert d.n == 4 and a.n == 2 and b.n == 2
        return s.mfma("v_mfma_f32_16x16x16_bf16", d, a, b, c)
    def smf(s, d, a, b, idx):
        assert d.n == 4 and a.n == 4 and b.n == 8
        ab = a.regs() + b.regs() + idx.regs()
        return s.add(Ins(f"v_smfmac_f32_16x16x64_bf16 {d}, {a}, {b}, {idx}", "smf", ab + d.regs(), d.regs(), srcc=d.regs(), ab=ab))
    def v(s, op, d, *srcs, kind="valu", rmw=False, extra_wr=(), extra_rd=(), mods=""):
        rd = []
        txt = []
        for x in srcs:
            if isinstance(x, tuple):
                txt.append(x[0] % str(x[1])); rd += regs_of(x[1])
            else:
                txt.append(str(x)); rd += regs_of(x)
        if rmw: rd += regs_of(d)
        if op.startswith(("v_exp", "v_rcp", "v_rsq", "v_log", "v_sqrt")): kind = "trans"
        return s.add(Ins(f"{op} {d}, " + ", ".join(txt) + (" " + mods if mods else ""), kind, rd + list(extra_rd),
                         regs_of(d) + list(extra_wr)))
    def swap(s, op, a, b):
        return s.add(Ins(f"{op} {a}, {b}", "perm", a.regs() + b.regs(), a.regs() + b.regs()))
    def s(s_, op, d, *srcs, scc=False, rdscc=False):
        rd = []
        for x in srcs: rd += regs_of(x)
        wr = regs_of(d)
        if scc and getattr(s_, "track_scc", False): wr = wr + ["scc"]
        if rdscc: rd = rd + ["scc"]
        return s_.add(Ins(f"{op} {d}" + "".join(f", {x}" for x in srcs), "salu", rd, wr))
    def scmp(s_, op, a, b):
        return s_.add(Ins(f"{op} {a}, {b}", "salu", regs_of(a) + regs_of(b), ["scc"]))
    def dsr(s, op, d, addr, off, res=()):
        assert 0 <= off < 65536, off
        return s.add(Ins(f"{op} {d}, {addr} offset:{off}", "dsr", addr.regs(), d.regs(), res_rd=res))
    def dsw(s, op, addr, data, off, res=()):
        assert 0 <= off < 65536, off
        return s.add(Ins(f"{op} {addr}, {data} offset:{off}", "dsw", addr.regs() + data.regs(), (), res_wr=res))
    def vld(s, op, d, voff, srd, soff, off=0, flags=""):
        assert 0 <= off < 4096
        o = f" offset:{off}" if off else ""
        return s.add(Ins(f"{op} {d}, {voff}, {srd}, {soff} offen{o} {flags}".rstrip(), "vld",
                         voff.regs() + srd.regs() + regs_of(soff), d.regs(), res_rd=("VM",), res_wr=("VM",)))
    def vst(s, op, data, voff, srd, soff, off=0, flags=""):
        assert 0 <= off < 4096
        o = f" offset:{off}" if off else ""
        return s.add(Ins(f"{op} {data}, {voff}, {srd}, {soff} offen{o} {flags}".rstrip(), "vst",
                         data.regs() + voff.regs() + srd.regs() + regs_of(soff), (), res_rd=("VM",), res_wr=("VM",),
                         data=data.regs()))
    def dma(s, voff, srd, soff, res, flags="", off=0):
        if off: flags = (f"offset:{off} " + flags).strip()
        return s.add(Ins(f"buffer_load_dwordx4 {voff}, {srd}, {soff} offen {flags} lds".replace("  ", " "), "dma",
                         voff.regs() + srd.regs() + regs_of(soff) + ["m0"], (), res_rd=("VM",), res_wr=tuple(res) + ("VM",)))
    def bar(s, res):
        return s.add(Ins("s_barrier", "bar", (), (), res_rd=tuple(res) + ("BAR",), res_wr=tuple(res) + ("BAR",)))
    def raw(s, txt, kind="salu", rd=(), wr=(), res_rd=(), res_wr=()):
        return s.add(Ins(txt, kind, rd, wr, res_rd=res_rd, res_wr=res_wr))

def first_kind(i): return i.sub[0].kind if i.sub else i.kind
def flat(i): return i.sub if i.sub else [i]
def cost(i): return sum(COST[x.kind] for x in flat(i))

def edge_lat(p, c, typ, reg):
    pk = p.sub[-1].kind if p.sub else p.kind
    ck = first_kind(c)
    if p.sub:
        for x in p.sub:
            if reg in x.wr or reg in x.res_wr: pk = x.kind
    if typ == "res":
        if reg in ("VM", "BAR"): return cost(p)
        if ck == "bar":
            if pk in ("dsw", "dsr"): return 60
            if pk == "dma": return LAT_VM
        if isinstance(reg, tuple) and reg[0] == "SY": return SYNC_DIST[0]
        if pk == "dma" and ck in ("dsr", "dsw"): return LAT_VM
        if pk == "bar": return 20
        if pk == "dsr" and ck == "dma": return LAT_DS
        return cost(p)
    if typ == "raw":
        if pk in ("mfma", "smf"):
            if ck in ("mfma", "smf") and tuple(sorted(p.wr)) == tuple(sorted(c.srcc)) and reg not in c.ab:
                return 16 if p.txt.split()[0] == c.txt.split()[0] else 36
            return 44
        if pk == "dsr": return LAT_DS
        if pk == "vld": return LAT_VM
        if pk in VALU_KINDS:
            if ck in ("mfma", "smf", "perm") or "dpp" in c.txt: return cost(p) + 8
            if pk == "trans": return 12
            if reg[0] == "s" or reg == "vcc":
                return 24 if ck in ("vld", "vst", "dma") else 12
            return cost(p)
        if pk == "salu" and reg == "m0": return 8
        return cost(p)
    if typ == "waw":
        if pk in ("mfma", "smf") and ck not in ("mfma", "smf"): return 44
        if pk == "dsr": return LAT_DS
        if pk == "vld": return LAT_VM
        return cost(p)
    if typ == "war":
        if pk in ("mfma", "smf") and reg in p.srcc and ck in VALU_KINDS: return 24
        if pk == "vst": return 12
        return cost(p)

def build_dag(ins):
    lastw, readers = {}, {}
    for n, i in enumerate(ins):
        i.idx = n; i.preds = {}; i.succs = []; i.cost = cost(i)
    def edge(p, c, typ, reg):
        if p is c: return
        l = edge_lat(p, c, typ, reg)
        if c.preds.get(p.idx, -1) < l: c.preds[p.idx] = l
    for i in ins:
        for (rs, ws, isres) in ((i.rd, i.wr, False), (i.res_rd, i.res_wr, True)):
            for r in rs:
                k = (isres, r)
                if k in lastw: edge(lastw[k], i, "res" if isres else "raw", r)
            for r in ws:
                k = (isres, r)
                if k in lastw: edge(lastw[k], i, "res" if isres else "waw", r)
                for q in readers.get(k, ()): edge(q, i, "res" if isres else "war", r)
            for r in rs: readers.setdefault((isres, r), []).append(i)
            for r in ws:
                lastw[(isres, r)] = i; readers[(isres, r)] = []
    for i in ins:
        for p, l in i.preds.items(): ins[p].succs.append((i.idx, l))

def schedule(ins, mode="cp", vm_gap=70, verbose=False):
    build_dag(ins)
    n = len(ins)
    cp = [0] * n
    for i in reversed(ins):
        b = i.cost
        for (s_, l) in i.succs:
            b = max(b, min(l, 300) + cp[s_])
        cp[i.idx] = b
    for i in ins:
        if mode == "cp": i.prio = -(cp[i.idx] + i.bias)
        else: i.prio = i.idx - i.bias
        i.npred = len(i.preds); i.rt = 0
    avail = [i for i in ins if i.npred == 0]
    t = 0; mf_free = 0; vm_free = 0
    out = []
    vmq = []
    ds_out = []
    idle = 0
    def is_m(i): return first_kind(i) in ("mfma", "smf") and not i.sub
    def is_vm(i): return any(x.kind in ("vld", "vst", "dma") for x in flat(i))
    def is_ds(i): return any(x.kind in ("dsr", "dsw") for x in flat(i))
    while avail:
        ds_out = [x for x in ds_out if x > t]
        def eff(i):
            e = i.rt
            if is_m(i): e = max(e, mf_free)
            if is_vm(i):
                e = max(e, vm_free)
                if len(vmq) >= VM_INFLIGHT: e = max(e, vmq[-VM_INFLIGHT])
            if is_ds(i) and len(ds_out) >= 12: e = max(e, min(ds_out))
            return e
        rdy = [i for i in avail if eff(i) <= t]
        if not rdy:
            nt = min(eff(i) for i in avail)
            idle += nt - t
            t = nt
            continue
        ms = [i for i in rdy if is_m(i)]
        if ms: pick = min(ms, key=lambda i: (i.prio, i.idx))
        else: pick = min(rdy, key=lambda i: (i.prio, i.idx))
        avail.remove(pick)
        out.append((t, pick))
        if is_m(pick): mf_free = t + 16
        if is_vm(pick):
            g = 0
            for x in flat(pick):
                if x.kind in ("vld", "dma"): g += vm_gap if "x4" in x.txt else 16
                elif x.kind == "vst": g += 32
            vm_free = t + g
            if g >= vm_gap: vmq.append(max(pick.arrive, t + 500))
        for x in flat(pick):
            if x.kind in ("dsr", "dsw"): ds_out.append(t + LAT_DS)
        for (s_, l) in pick.succs:
            c = ins[s_]
            if l == LAT_VM and pick.arrive: c.rt = max(c.rt, pick.arrive, t + 500)
            else: c.rt = max(c.rt, t + l)
            c.npred -= 1
            if c.npred == 0: avail.append(c)
        t += pick.cost
    assert len(out) == n
    return out, t, idle

def finalize(order, pre_vm=0):
    seq = []
    for i in order: seq += flat(i)
    lines = []
    lg = []
    vm = []
    hist = []
    pos = 0
    stats = {"nop": 0, "wait": 0}
    for i in seq:
        touched = i.rd | i.wr
        need_lg = None; need_vm = None
        for k, o in enumerate(lg):
            dep = bool(o.wr & touched)
            if i.kind == "bar" and ((o.res_rd | o.res_wr) & i.res_wr): dep = True
            if i.kind == "dma" and ((o.res_rd | o.res_wr) & (i.res_wr - {"VM"})): dep = True
            if dep: need_lg = len(lg) - 1 - k
        for k, o in enumerate(vm):
            dep = bool(o.wr & touched)
            if o.kind == "dma" and i.kind != "dma" and ((o.res_wr - {"VM"}) & (i.res_rd | i.res_wr)): dep = True
            if dep: need_vm = len(vm) - 1 - k
        if need_lg is not None or need_vm is not None:
            w = []
            if need_vm is not None:
                nv = min(need_vm, 63); w.append(f"vmcnt({nv})"); vm = vm[len(vm) - nv:] if nv else []
            if need_lg is not None:
                nl = min(need_lg, 15); w.append(f"lgkmcnt({nl})"); lg = lg[len(lg) - nl:] if nl else []
            lines.append("    s_waitcnt " + " ".join(w)); pos += 1; stats["wait"] += 1
        need = 0
        for (p, pp) in hist[-24:]:
            d = pos - pp - 1
            req = 0
            pk, ck = p.kind, i.kind
            isv = ck in VALU_KINDS
            if pk in ("mfma", "smf"):
                if ck in ("mfma", "smf"):
                    if p.wr & i.ab: req = 8
                    elif p.wr & set(i.srcc):
                        req = 0 if (tuple(sorted(p.wr)) == tuple(sorted(i.srcc)) and p.txt.split()[0] == i.txt.split()[0]) else 6
                elif p.wr & touched: req = 8
                if isv and (set(p.srcc) & i.wr): req = max(req, 3)
            elif pk in VALU_KINDS:
                vw = {r for r in p.wr if r[0] in "va" and r != "vcc"}
                sw = p.wr - vw
                if ck in ("mfma", "smf") and (vw & i.rd): req = 2
                if ck == "perm" and (vw & i.rd): req = 2
                if "dpp" in i.txt and (vw & i.rd): req = 2
                if ("readfirstlane" in i.txt or "readlane" in i.txt) and (vw & i.rd): req = 1
                if pk == "trans" and isv and ck != "trans" and (vw & i.rd): req = max(req, 1)
                if pk == "trans" and not isv and (vw & i.rd): req = max(req, 1)
                if sw & i.rd:
                    if isv: req = max(req, 2)
                    if ck in ("vld", "vst", "dma"): req = max(req, 5)
                    if ck == "salu": req = max(req, 1)
            elif pk == "salu":
                if "m0" in p.wr and ck == "dma": req = 1
            elif pk == "vst":
                if ("x4" in p.txt or "x3" in p.txt) and (p.data & i.wr): req = 2
            if req - d > need: need = req - d
        if need > 0:
            lines.append(f"    s_nop {need-1}"); pos += need; stats["nop"] += need
        lines.append("    " + i.txt + (f"    ; {i.tag}" if i.tag else ""))
        hist.append((i, pos)); pos += 1
        if i.kind in ("dsr", "dsw"): lg.append(i)
        if i.kind in ("vld", "vst", "dma"): vm.append(i)
    return lines, stats
```

```python
from sched import *
import sched

def hazard_need(hist, pos, i):
    touched = i.rd | i.wr
    need = 0
    for (p, pp) in hist[-12:]:
        d = pos - pp - 1
        if d >= 8: continue
        req = 0
        pk, ck = p.kind, i.kind
        isv = ck in VALU_KINDS
        if pk in ("mfma", "smf"):
            if ck in ("mfma", "smf"):
                if p.wr & i.ab: req = 8
                elif p.wr & set(i.srcc):
                    req = 0 if (tuple(sorted(p.wr)) == tuple(sorted(i.srcc)) and p.txt.split()[0] == i.txt.split()[0]) else 6
            elif p.wr & touched: req = 8
            if isv and (set(p.srcc) & i.wr): req = max(req, 3)
        elif pk in VALU_KINDS:
            vw = {r for r in p.wr if r[0] in "va" and r != "vcc"}
            sw = p.wr - vw
            if ck in ("mfma", "smf") and (vw & i.rd): req = 2
            if ck == "perm" and (vw & i.rd): req = 2
            if "dpp" in i.txt and (vw & i.rd): req = 2
            if ("readfirstlane" in i.txt or "readlane" in i.txt) and (vw & i.rd): req = 1
            if pk == "trans" and ck != "trans" and (vw & i.rd): req = max(req, 1)
            if sw & i.rd:
                if isv: req = max(req, 2)
                if ck in ("vld", "vst", "dma"): req = max(req, 5)
                if ck == "salu": req = max(req, 1)
        elif pk == "salu":
            if "m0" in p.wr and ck == "dma": req = 1
        elif pk == "vst":
            if ("x4" in p.txt or "x3" in p.txt) and (p.data & i.wr): req = 2
        if req - d > need: need = req - d
    return need

def wait_need(lg, vm, i):
    touched = i.rd | i.wr
    nl = nv = None
    for k, (o, _) in enumerate(lg):
        dep = bool(o.wr & touched)
        if i.kind == "bar" and ((o.res_rd | o.res_wr) & i.res_wr): dep = True
        if i.kind == "dma" and ((o.res_rd | o.res_wr) & (i.res_wr - {"VM"})): dep = True
        if dep: nl = len(lg) - 1 - k
    for k, (o, _) in enumerate(vm):
        dep = bool(o.wr & touched)
        if o.kind == "dma" and i.kind != "dma" and ((o.res_wr - {"VM"}) & (i.res_rd | i.res_wr)): dep = True
        if dep: nv = len(vm) - 1 - k
    return nl, nv

def schedule2(ins, mode="idx", vm_gap=66, merge=120, t0=480, inflight=11.5, trace=None):
    build_dag(ins)
    n = len(ins)
    cp = [0] * n
    for i in reversed(ins):
        b = i.cost
        for (s_, l) in i.succs: b = max(b, min(l, 300) + cp[s_])
        cp[i.idx] = b
    for i in ins:
        i.prio = -(cp[i.idx] + i.bias) if mode == "cp" else i.idx - i.bias
        i.npred = len(i.preds); i.rt = 0
    avail = [i for i in ins if i.npred == 0]
    st = dict(t=t0, pos=0, idle=0, nop=0, wait=0)
    lines = []; hist = []; lg = []; vm = []; marks = []
    mf_free = 0; vm_free = 0; vmq = []
    isM = {}; isVM = {}; isDS = {}
    for i in ins:
        f = flat(i)
        isM[i.idx] = (not i.sub) and i.kind in ("mfma", "smf")
        isVM[i.idx] = any(x.kind in ("vld", "vst", "dma") for x in f)
        isDS[i.idx] = any(x.kind in ("dsr", "dsw") for x in f)
    def emit_wait(nl, nv):
        nonlocal lg, vm
        t = st["t"]
        w = []
        if nv is not None:
            while nv > 0 and vm[len(vm) - nv][1] <= t: nv -= 1
            nv = min(nv, 63); w.append(f"vmcnt({nv})"); vm = vm[len(vm) - nv:] if nv else []
        if nl is not None:
            while nl > 0 and lg[len(lg) - nl][1] + merge <= t: nl -= 1
            nl = min(nl, 15); w.append(f"lgkmcnt({nl})"); lg = lg[len(lg) - nl:] if nl else []
        lines.append("    s_waitcnt " + " ".join(w))
        if trace is not None: trace.append((t, "wait " + " ".join(w), ""))
        st["pos"] += 1; st["t"] += 4; st["wait"] += 1
    def vm_block():
        t = st["t"]
        pend = sorted([x for x in vmq if x[0] > t])
        tot = sum(w for _, w in pend)
        e = t
        for a, w in pend:
            if tot <= inflight: break
            tot -= w; e = a
        return e
    while avail:
        t = st["t"]
        nds = sum(1 for (_, it) in lg if it + sched.LAT_DS > t)
        vb = None
        def eff(i):
            nonlocal vb
            e = i.rt
            if isM[i.idx]: e = max(e, mf_free)
            if isVM[i.idx]:
                if vb is None: vb = vm_block()
                e = max(e, vm_free, vb)
            if isDS[i.idx] and len(lg) >= 14: e = max(e, lg[0][1] + merge)
            return e
        rdy = [i for i in avail if eff(i) <= t]
        key = lambda i: (i.prio, i.idx)
        def clean(i): return hazard_need(hist, st["pos"], flat(i)[0]) == 0
        pick = None
        ms = sorted([i for i in rdy if isM[i.idx]], key=key)
        for i in ms:
            if clean(i): pick = i; break
        if pick is None:
            nxt = sorted([i for i in avail if isM[i.idx] and i.rt <= max(mf_free, t) and mf_free > t], key=key)
            if nxt:
                nl, nv = wait_need(lg, vm, nxt[0])
                if (nl is not None or nv is not None) and nxt[0].rt <= t + 4:
                    emit_wait(nl, nv); continue
            os_ = sorted([i for i in rdy if not isM[i.idx]], key=key)
            for i in os_:
                if clean(i): pick = i; break
        if pick is None:
            fut = [eff(i) for i in avail if eff(i) > t]
            nt = min(fut) if fut else None
            if rdy:
                best = min(rdy, key=lambda i: (hazard_need(hist, st["pos"], flat(i)[0]), key(i)))
                hn = hazard_need(hist, st["pos"], flat(best)[0])
                if nt is None or nt - t > 4 * hn or True:
                    if nt is not None and nt - t <= 4:
                        st["idle"] += nt - t; st["t"] = nt; continue
                    pick = best
            else:
                st["idle"] += nt - t
                if trace is not None: trace.append((t, f"<<< idle {nt-t}", ""))
                st["t"] = nt; continue
        avail.remove(pick)
        tissue = None
        for x in flat(pick):
            if x.kind in ("dsr", "dsw") and len(lg) >= 15:
                emit_wait(len(lg) - 1 - 0 if False else 13, None)
            nl, nv = wait_need(lg, vm, x)
            if nl is not None or nv is not None: emit_wait(nl, nv)
            hn = hazard_need(hist, st["pos"], x)
            if hn:
                lines.append(f"    s_nop {hn-1}"); st["pos"] += hn; st["t"] += 4 + (hn - 1); st["nop"] += hn
                if trace is not None: trace.append((st["t"], f"nop {hn}", ""))
            if x.kind in ("mfma", "smf") and st["t"] < mf_free: st["t"] = mf_free
            if tissue is None: tissue = st["t"]
            lines.append("    " + x.txt + (f"    ; {x.tag}" if x.tag else ""))
            if trace is not None: trace.append((st["t"], x.txt, x.tag))
            hist.append((x, st["pos"])); st["pos"] += 1
            if x.kind in ("dsr", "dsw"): lg.append((x, st["t"]))
            if x.kind in ("vld", "vst", "dma"):
                arr = max(pick.arrive, st["t"] + (1800 if (x.kind == "dma" and st["t"] > 3000) else 700))
                arr = max([arr] + [a for _, a in vm[-1:]])
                vm.append((x, arr))
                big = "x4" in x.txt
                vm_free = st["t"] + (vm_gap if (big or "x2" in x.txt) else 32)
                if x.kind != "vst": vmq.append((arr, 1.0 if big else 0.15))
                pick_arr = arr
            if x.kind in ("mfma", "smf"): mf_free = st["t"] + 16
            if x.kind == "bar": marks.append((st["t"], x.tag))
            st["t"] += COST[x.kind]
        for (s_, l) in pick.succs:
            c = ins[s_]
            if l == sched.LAT_VM: c.rt = max(c.rt, pick_arr)
            else: c.rt = max(c.rt, tissue + l)
            c.npred -= 1
            if c.npred == 0: avail.append(c)
    return lines, st, marks
```

```python
import re, bisect
from sched import *
import sched
from sched2 import hazard_need, wait_need

class PI:
    __slots__ = ("txt", "kind", "rd", "wr", "res_rd", "res_wr", "srcc", "ab", "data", "tag")

QRE = re.compile(r"\bq\[(\d+):(\d+)\]|\bq(\d+)\b")

def vq_of(i):
    s = set()
    for x in flat(i):
        for r in x.rd | x.wr:
            if r[0] == "q": s.add(int(r[1:]) >> 2)
    return s

def schedule4(ins, pool, late_pool=None, octs=(), vm_gap=66, merge=120, t0=480, inflight=11.5, kahead=12, window=400,
              reserve=0, l2lat=700, nfixed=0, trace=None):
    build_dag(ins)
    n = len(ins)
    vqs = [vq_of(i) for i in ins]
    octs = set(octs)
    mate = {}
    for a in octs: mate[a] = a + 1; mate[a + 1] = a
    for k in range(n):
        vqs[k] = vqs[k] | {mate[v] for v in vqs[k] if v in mate}
    users = {}
    for i in ins:
        for v in vqs[i.idx]: users.setdefault(v, []).append(i.idx)
    remaining = {v: len(u) for v, u in users.items()}
    phys = {}
    free = [(-1000 + k, b) for k, b in enumerate(pool)]
    fclock = [0]
    late_left = [[set(i.idx for i in ins if (i.rd | i.wr) & rs), qs] for rs, qs in (late_pool or [])]
    isM = [(not i.sub) and i.kind in ("mfma", "smf") for i in ins]
    isVM = [any(x.kind in ("vld", "vst", "dma") for x in flat(i)) for i in ins]
    isDS = [any(x.kind in ("dsr", "dsw") for x in flat(i)) for i in ins]
    isW = [any(x.kind == "dsw" for x in flat(i)) for i in ins]
    vdst = [any(r[0] == 'q' for r in i.wr) for i in ins]
    urgent = [i.tag.startswith(('wtr', 'wload', 'dma')) for i in ins]
    dw_free = 0; last_kind = ""
    feed = {}
    for i in ins:
        if i.kind == "dsr":
            c = [s_ for (s_, l) in i.succs if isM[s_] and (ins[s_].ab & i.wr)]
            if c: feed[i.idx] = min(c)
    unM = [i.idx for i in ins if isM[i.idx]]
    unI = list(range(n))
    for i in ins:
        i.prio = i.idx - i.bias
        i.npred = len(i.preds); i.rt = 0
    avail = [i for i in ins if i.npred == 0]
    st = dict(t=t0, pos=0, idle=0, nop=0, wait=0, minfree=99)
    lines = []; hist = []; lg = []; vm = []; marks = []
    mf_free = 0; vm_free = 0; vmq = []
    def mapname(r, tmp):
        if r[0] != "q": return r
        k = int(r[1:]); b = phys.get(k >> 2, tmp.get(k >> 2))
        return f"v{b + (k & 3)}"
    def conv(x, tmp):
        p = PI()
        def sub(m):
            if m.group(3) is not None:
                return mapname("q" + m.group(3), tmp)
            a, b = int(m.group(1)), int(m.group(2))
            base = phys.get(a >> 2, tmp.get(a >> 2))
            return f"v[{base + (a & 3)}:{base + (a & 3) + b - a}]"
        p.txt = QRE.sub(sub, x.txt); p.kind = x.kind; p.tag = x.tag
        p.rd = {mapname(r, tmp) for r in x.rd}; p.wr = {mapname(r, tmp) for r in x.wr}
        p.res_rd = x.res_rd; p.res_wr = x.res_wr
        p.srcc = tuple(mapname(r, tmp) for r in x.srcc); p.ab = {mapname(r, tmp) for r in x.ab}
        p.data = {mapname(r, tmp) for r in x.data}
        return p
    def tentative(i):
        need = sorted(v for v in vqs[i.idx] if v not in phys)
        if not need: return {}
        fd = {b: tm for tm, b in free}
        out = {}
        for v in need:
            if v in octs:
                c = [(max(fd[b], fd[b + 4]), b) for b in fd if b % 8 == 0 and b + 4 in fd]
                if not c: c = [(max(fd[b], fd[b + 4]), b) for b in fd if b + 4 in fd]
                if not c: return None
                b = min(c)[1]; out[v] = b; out[v + 1] = b + 4; del fd[b]; del fd[b + 4]
        for v in need:
            if v in mate: continue
            if not fd: return None
            recent = fclock[0] - 2
            c = [((b ^ 4) in fd and oct_soon[0], tm > recent, tm, b) for b, tm in fd.items()]
            b = min(c, key=lambda x: (x[1], x[0], x[2]))[3]; out[v] = b; del fd[b]
        return out
    oct_soon = [True]
    def emit_wait(nl, nv):
        nonlocal lg, vm
        t = st["t"]; w = []
        if nv is not None:
            while nv > 0 and vm[len(vm) - nv][1] + 400 <= t: nv -= 1
            nv = min(nv, 63); w.append(f"vmcnt({nv})"); vm = vm[len(vm) - nv:] if nv else []
        if nl is not None:
            while nl > 0 and lg[len(lg) - nl][1] + merge <= t: nl -= 1
            nl = min(nl, 15); w.append(f"lgkmcnt({nl})"); lg = lg[len(lg) - nl:] if nl else []
        lines.append("    s_waitcnt " + " ".join(w))
        if trace is not None: trace.append((t, "wait " + " ".join(w), ""))
        st["pos"] += 1; st["t"] += 4; st["wait"] += 1
    def vm_block():
        t = st["t"]
        pend = sorted([x for x in vmq if x[0] > t])
        tot = sum(w for _, w in pend); e = t
        for a, w in pend:
            if tot <= inflight: break
            tot -= w; e = a
        return e
    peak_cache = {}
    def peaks(upto):
        if peak_cache.get("v") is not None and peak_cache["upto"] >= upto: return peak_cache["v"]
        cur = 0; pk = 0; seen = set(); rem = {}
        out = {}
        for idx in unI:
            if idx > upto: break
            out[idx] = pk
            for v in vqs[idx]:
                if v not in phys and v not in seen:
                    seen.add(v); cur += 1
            pk = max(pk, cur)
            for v in vqs[idx]:
                r = rem.get(v, remaining[v]) - 1; rem[v] = r
                if r == 0: cur -= 1
        peak_cache["v"] = out; peak_cache["upto"] = upto
        return out
    def can_alloc(i):
        need = sum(1 for v in vqs[i.idx] if v not in phys)
        if need == 0: return True
        if need > len(free): return False
        if tentative(i) is None: return False
        if i.idx == unI[0]: return True
        pk = peaks(maxidx)[i.idx]
        return len(free) - need >= pk + (reserve if pk else 0)
    while avail:
        t = st["t"]
        vb = None
        base_idx = None
        for idx in unI:
            if not isVM[idx] and ins[idx].kind != "salu" and not ins[idx].tag.startswith("wtr"):
                base_idx = idx; break
        if base_idx is None: base_idx = unI[0]
        lim = base_idx + window
        cand = [i for i in avail if i.idx <= lim]
        if not cand: cand = [min(avail, key=lambda i: i.idx)]
        if unI[0] < nfixed: cand = [ins[unI[0]]]
        maxidx = max(i.idx for i in cand)
        def eff(i):
            nonlocal vb
            e = i.rt
            if isM[i.idx]: e = max(e, mf_free)
            if isVM[i.idx]:
                if vb is None: vb = vm_block()
                e = max(e, vm_free, vb)
            if isDS[i.idx] and len(lg) >= 14: e = max(e, lg[0][1] + merge)
            if isW[i.idx]: e = max(e, dw_free)
            return e
        def near(i):
            return bisect.bisect_left(unM, feed[i.idx]) <= kahead
        ok = []
        for i in cand:
            if i.idx in feed and vdst[i.idx] and not near(i): continue
            if can_alloc(i): ok.append(i)
        if not ok:
            ok = [i for i in cand if can_alloc(i)]
        if not ok:
            o_ = min(avail, key=lambda i: i.idx)
            maxidx = max(maxidx, o_.idx)
            assert can_alloc(o_), ("register deadlock", o_.txt, free)
            ok = [o_]
        rdy = [i for i in ok if eff(i) <= t]
        afterM = last_kind in ("mfma", "smf")
        msoon = any(isM[i.idx] and i.rt <= t + 24 for i in ok)
        def key(i):
            if isW[i.idx]: c = -1 if (afterM and msoon) else (2 if msoon else 1)
            elif urgent[i.idx]: c = -2
            elif i.idx in feed: c = 0
            else: c = 1
            return (c, i.prio, i.idx)
        def hz(i): return hazard_need(hist, st["pos"], conv(flat(i)[0], tentative(i)))
        pick = None
        for i in sorted([i for i in rdy if isM[i.idx]], key=key):
            if hz(i) == 0: pick = i; break
        if pick is None:
            if mf_free > t and not (afterM and any(isW[i.idx] for i in rdy)):
                nxt = sorted([i for i in ok if isM[i.idx] and i.rt <= mf_free], key=key)
                if nxt and nxt[0].rt <= t + 4:
                    nl, nv = wait_need(lg, vm, conv(nxt[0], tentative(nxt[0])))
                    if nl is not None or nv is not None:
                        emit_wait(nl, nv); continue
            for i in sorted([i for i in rdy if not isM[i.idx]], key=key):
                if hz(i) == 0: pick = i; break
        if pick is None:
            fut = [eff(i) for i in ok if eff(i) > t]
            nt = min(fut) if fut else None
            if rdy and not (nt is not None and nt - t <= 8):
                pick = min(rdy, key=lambda i: (hz(i), key(i)))
            else:
                st["idle"] += nt - t
                if trace is not None: trace.append((t, f"<<< idle {nt-t}", ""))
                st["t"] = nt; continue
        avail.remove(pick)
        tmp = tentative(pick)
        assert tmp is not None, ("out of registers", pick.txt, pick.tag)
        for v, b in tmp.items():
            phys[v] = b; free = [f for f in free if f[1] != b]
        st["minfree"] = min(st["minfree"], len(free))
        tissue = None; pick_arr = 0
        for x0 in flat(pick):
            x = conv(x0, {})
            if x.kind in ("dsr", "dsw") and len(lg) >= 15: emit_wait(13, None)
            nl, nv = wait_need(lg, vm, x)
            if nl is not None or nv is not None: emit_wait(nl, nv)
            hn = hazard_need(hist, st["pos"], x)
            if hn:
                lines.append(f"    s_nop {hn-1}")
                if trace is not None: trace.append((st["t"], f"nop {hn}", ""))
                st["pos"] += hn; st["t"] += 4 * hn; st["nop"] += hn
            if x.kind in ("mfma", "smf") and st["t"] < mf_free: st["t"] = mf_free
            if tissue is None: tissue = st["t"]
            lines.append("    " + x.txt + (f"    ; {x.tag}" if x.tag else ""))
            if trace is not None: trace.append((st["t"], x.txt + f"   [free {len(free)}]", x.tag))
            hist.append((x, st["pos"])); st["pos"] += 1
            if x.kind in ("dsr", "dsw"): lg.append((x, st["t"]))
            if x.kind in ("vld", "vst", "dma"):
                arr = max(pick.arrive, st["t"] + (1800 if (" nt" in x.txt and st["t"] > 3000) else l2lat))
                arr = max([arr] + [a for _, a in vm[-1:]])
                vm.append((x, arr))
                big = "x4" in x.txt
                vm_free = st["t"] + (vm_gap if (big or "x2" in x.txt) else 32)
                if x.kind != "vst": vmq.append((arr, 1.0 if big else 0.15))
                pick_arr = arr
            if x.kind in ("mfma", "smf"): mf_free = st["t"] + 16
            if x.kind == "bar": marks.append((st["t"], x.tag))
            if last_kind == "dsw" and x.kind in VALU_KINDS: st["t"] += 8
            if x.kind == "dsw":
                if st["t"] < dw_free: st["t"] = dw_free
                big = "b128" in x.txt
                dw_free = st["t"] + (52 if big else 28)
                st["t"] += 20 if big else 12
            else: st["t"] += COST[x.kind]
            last_kind = x.kind
        unI.remove(pick.idx)
        if isM[pick.idx]: unM.remove(pick.idx)
        for v in vqs[pick.idx]:
            remaining[v] -= 1
            if remaining[v] == 0:
                fclock[0] += 1; free.append((fclock[0], phys[v]))
        for ll in late_left:
            if ll[1] is None: continue
            ll[0].discard(pick.idx)
            if not ll[0]:
                for b in ll[1]:
                    fclock[0] += 1; free.append((fclock[0], b))
                ll[1] = None
        peak_cache["v"] = None
        for (s_, l) in pick.succs:
            c = ins[s_]
            if l == sched.LAT_VM: c.rt = max(c.rt, pick_arr)
            else: c.rt = max(c.rt, tissue + l)
            c.npred -= 1
            if c.npred == 0: avail.append(c)
    return lines, st, marks
```

```python
import sys, math, struct
from sched import *
from sched4 import schedule4
import sched

NAME = "standalone__window_attn_davit__vision"
def f32bits(x): return struct.unpack("<I", struct.pack("<f", x))[0]

ROW = 3744; PIX = 416
XT = 0
HB = 59904
H_OFF = [0, 22528]; BC_OFF = 18432; O_OFF = 40960
RING = HB + 59392
NR = 3
OUTB = RING; OPX = 400
SM = RING + 36864
HX_OFF, OX_OFF, X0X_OFF = 0, 1536, 3072
ST = SM + 4608
DUMMY = ST + 2048
LDS_TOTAL = DUMMY + 128
SRB = HB + 22528
LOC = {"R0": RING, "R1": RING + 12288, "R2": RING + 24576, "H": HB + 22528, "O": HB + 40960, "X0": XT + 9 * ROW, "X1": XT + 9 * ROW + 12288}
PATCH = HB + O_OFF
assert LDS_TOTAL <= 163840

def V(i, n=1): return R("v", i, n)
def A(i, n=1): return R("a", i, n)
def S(i, n=1): return R("s", i, n)

NPOOL = 132
p_ = [NPOOL]
def fix(n):
    r = V(p_[0], n); p_[0] += n; return r
convA = fix(36); WOV = fix(32); KX = fix(6); QX = fix(6); VB = fix(12); ONES = fix(6); IDENT = fix(2)
aCV = fix(6)
aCV1 = [aCV[k] for k in range(3)]; aCV2 = [aCV[3 + k] for k in range(3)]
aOW = [fix(1) for _ in range(3)]
aW128, aW64, aRD, aBCR, aSTW, aSTR, aXW128, aXW64, voffX, aOR, voffO, voffO6, SIDX = [fix(1) for _ in range(13)]
SPARE = p_[0]
assert SPARE <= 255, SPARE

class RA:
    def __init__(s): s.n = 0; s.octs = []
    def q(s):
        s.n += 1; return R("q", 4 * (s.n - 1), 4)
    def o(s):
        s.octs.append(s.n); s.n += 2; return R("q", 4 * (s.n - 2), 8)
    def p(s): return s.q()[0:2]
    def rel(s, *rs): pass

def wunit(sl, ks):
    base = (sl * 6 + ks) * 12
    return [A(base + 4 * ft, 4) if base + 4 * ft < 256 else WOV[base + 4 * ft - 256:base + 4 * ft - 252] for ft in range(3)]
SL_K, SL_V, SL_Q, SL_O = 0, 1, 2, 3
SL_COL = {SL_Q: 0, SL_K: 384, SL_V: 768}

srdX, srdDW, srdWQ, srdWO, srdOUT = S(16, 4), S(20, 4), S(24, 4), S(28, 4), S(32, 4)
sW, sXCD, sCOL, sROW, sM0, sTMP, sTMP2, sWOFF, sC, sINV, sEPS = [S(36 + i) for i in range(11)]
sOUT = [S(48 + i) for i in range(4)]
sM1, sM2, sM3, sLO = S(52, 2), S(54, 2), S(56, 2), S(58, 2)
sMX = [S(60 + 2 * i, 2) for i in range(4)]
sSO = [S(68 + i) for i in range(4)]
sT3 = S(76, 2)
sA, sB, sD, sE = S(84), S(85), S(86), S(87)
sPC = S(88, 2)
sRS, sGS, sRW = S(90), S(91), S(92)

CFG = dict(xt0=1850, xdt=150, wdt=80, w0=-300, rf_at=24, hoist=0, slots="R0/R1/R2/H/O/R0/R1/R2/H/R0/R1/X0/X1/R2/R0/R1/X0/X1/R2/R0/R1/X0/X1/R2", stflags="", codepf=1, kahead=14, window=150)

def gen(stamps=False):
    P = Prog(); ra = RA()
    P.track_scc = True
    tid, lane, t_, g_ = V(0), V(1), V(2), V(3)
    tmp1, tmp2, tmp3, tmp4 = V(4), V(5), V(6), V(7)
    pixr, chr_, hi, vp = V(8), V(9), V(10), V(11)
    dA, dB, dC, cpd = V(12), V(13), V(14), V(15)
    tch, tch2, td1, td2 = V(16), V(17), V(18), V(19)
    H = P
    P.tag = "head"
    if stamps:
        H.raw("s_memtime s[78:79]", "smem", wr=["s78", "s79"]); H.raw("s_memrealtime s[80:81]", "smem", wr=["s80", "s81"])
    for k, o in ((16, 0), (20, 8), (24, 16), (28, 24), (32, 32)):
        H.raw(f"s_load_dwordx2 s[{k}:{k+1}], s[0:1], {o}", "smem", wr=[f"s{k}", f"s{k+1}"])
    if stamps: H.raw("s_load_dwordx2 s[72:73], s[0:1], 48", "smem", wr=["s72", "s73"])
    H.raw("s_cmp_ge_u32 s2, 256")
    H.raw("s_cbranch_scc1 L_end")
    clk = [CFG["xt0"]]
    H.s("s_lshr_b32", sCOL, S(2), 3, scc=True)
    if CFG["codepf"]:
        H.raw("s_getpc_b64 s[88:89]", wr=["s88", "s89"])
        H.v("v_lshrrev_b32", tmp1, 4, tid)
        H.v("v_lshlrev_b32", tmp1, 7, tmp1)
        H.v("v_lshl_add_u32", tmp1, sCOL, 11, tmp1)
        H.v("v_min_u32", tmp1, "CODE_REMAIN", tmp1)
        i = P.add(Ins(f"global_load_dword {cpd}, {tmp1}, s[88:89]", "vld", tmp1.regs() + ["s88", "s89"], cpd.regs(),
                      res_rd=("VM",), res_wr=("VM",)))
        i.arrive = clk[0]
    H.v("v_lshrrev_b32", tmp2, 6, tid)
    H.v("v_and_b32", lane, 63, tid)
    H.v("v_readfirstlane_b32", sW, tmp2)
    H.s("s_and_b32", sXCD, S(2), 7, scc=True)
    H.s("s_mov_b32", srdX[2], 19267584); H.s("s_mov_b32", srdX[3], "0x20000")
    H.s("s_mul_i32", sTMP, sW, 60)
    H.s("s_min_u32", sTMP, sTMP, 170, scc=True)
    H.s("s_mul_i32", sTMP2, sCOL, 7)
    H.s("s_sub_u32", sTMP2, sTMP2, 1, scc=True)
    H.v("v_add_u32", tmp3, sTMP, lane)
    H.v("v_mul_u32_u24", pixr, 2521, tmp3)
    H.v("v_lshrrev_b32", pixr, 16, pixr)
    H.v("v_mul_u32_u24", chr_, 26, pixr)
    H.v("v_sub_u32", chr_, tmp3, chr_)
    H.v("v_add_u32", tmp2, sTMP2, pixr)
    H.v("v_cmp_gt_u32", sT3, 24, chr_)
    H.v("v_cmp_gt_u32", "vcc", 224, tmp2)
    H.v("v_mul_u32_u24", tmp2, 384, tmp2)
    H.v("v_lshl_add_u32", tmp2, chr_, 4, tmp2)
    H.s("s_and_b64", "vcc", "vcc", sT3, scc=True)
    H.v("v_bfrev_b32", tmp4, 2)
    H.s("s_lshl_b32", sM0, sTMP, 4, scc=True)
    H.v("v_cndmask_b32", voffX, tmp4, tmp2, "vcc")
    H.s("s_mul_i32", sROW, sXCD, 28 * 86016)
    H.s("s_mov_b32", sGS, 86016)
    H.s("s_movk_i32", sRS, ROW)
    H.s("s_sub_u32", sSO[0], sROW, sGS, scc=True)
    H.s("s_cselect_b32", sSO[0], "0x40000000", sSO[0], rdscc=True)
    H.s("s_mov_b32", "m0", sM0)
    H.s("s_mov_b32", sSO[1], sROW)
    H.raw("s_waitcnt lgkmcnt(0)")
    P.track_scc = False
    def arr(dt):
        clk[0] += dt; P.ins[-1].arrive = clk[0]
    for r in range(9):
        P.tag = f"dma r{r}"
        if r:
            P.s("s_add_u32", "m0", "m0", sRS)
            if r > 1: P.s("s_add_u32", sSO[1], sSO[1], sGS)
            else: P.raw("s_nop 0")
        P.dma(voffX, srdX, sSO[1] if r else sSO[0], [("XT", r)], "nt"); arr(CFG["xdt"])
    P.tag = "patch"
    P.v("v_mul_u32_u24", tmp1, 86, pixr)
    P.v("v_lshrrev_b32", tmp1, 8, tmp1)
    P.v("v_mul_u32_u24", tmp2, 3, tmp1)
    P.v("v_sub_u32", tmp2, pixr, tmp2)
    P.v("v_add_u32", tmp2, sTMP2, tmp2)
    P.v("v_cmp_le_i32", "vcc", 0, tmp2)
    P.v("v_mul_u32_u24", tmp1, 7 * 86016, tmp1)
    P.v("v_mul_u32_u24", tmp2, 384, tmp2)
    P.s("s_and_b64", "vcc", "vcc", sT3)
    P.v("v_lshl_add_u32", tmp2, chr_, 4, tmp2)
    P.v("v_add_u32", tmp2, tmp2, tmp1)
    P.v("v_cndmask_b32", vp, tmp4, tmp2, "vcc")
    for r in range(3):
        if r == 0:
            P.s("s_add_u32", "m0", sM0, PATCH); P.s("s_add_u32", sSO[1], sROW, 12 * 86016)
        else:
            P.s("s_add_u32", "m0", "m0", sRS); P.s("s_add_u32", sSO[1], sSO[1], sGS)
        P.dma(vp, srdX, sSO[1], [("PATCH",)], "nt"); arr(CFG["xdt"])
    P.tag = "dw"
    P.v("v_and_b32", t_, 15, lane)
    P.v("v_lshrrev_b32", g_, 4, lane)
    P.v("v_lshrrev_b32", hi, 5, lane)
    P.s("s_mov_b32", srdDW[2], 3456); P.s("s_mov_b32", srdDW[3], "0x20000")
    P.s("s_mul_i32", sWOFF, sW, 96)
    P.v("v_and_b32", tmp1, 14, lane)
    P.v("v_lshlrev_b32", tmp1, 1, tmp1)
    P.v("v_mov_b32", dA, tmp1)
    P.v("v_add_u32", tmp2, g_, hi)
    P.v("v_mul_u32_u24", tmp2, 384, tmp2)
    P.v("v_add_u32", dB, tmp1, tmp2)
    P.v("v_lshlrev_b32", tmp2, 2, g_)
    P.v("v_mov_b32", tmp3, "0x8276")
    P.v("v_bfe_u32", tmp2, tmp3, tmp2, 4)
    P.v("v_mul_u32_u24", tmp2, 384, tmp2)
    P.v("v_add_u32", dC, tmp1, tmp2)
    def cA(ct, p): return convA[(ct * 3 + p) * 4:(ct * 3 + p) * 4 + 4]
    for ct in range(3):
        for p in range(3):
            P.vld("buffer_load_dword", cA(ct, p)[3], (dA, dB, dC)[p], srdDW, sWOFF, (5 * 384 if p == 0 else 0) + 32 * ct); arr(0)
    P.tag = "touch"
    P.s("s_mov_b32", srdWQ[2], 221184); P.s("s_mov_b32", srdWQ[3], "0x20000")
    P.s("s_mov_b32", srdWO[2], 73728); P.s("s_mov_b32", srdWO[3], "0x20000")
    P.s("s_lshl_b32", sA, sCOL, 2)
    P.s("s_add_u32", sA, sA, sW)
    P.v("v_lshlrev_b32", tch, 7, t_)
    P.v("v_and_b32", tch2, "0x380", tch)
    P.s("s_lshl_b32", sB, sA, 11)
    P.s("s_lshl_b32", sD, sA, 10)
    P.vld("buffer_load_dword", td1, tch, srdWQ, sB); arr(0)
    P.vld("buffer_load_dword", td2, tch2, srdWO, sD); arr(0)
    nfixed = len(P.ins)

    so_i = [1]
    def nso():
        so_i[0] = (so_i[0] + 1) % 4
        return sSO[so_i[0]]
    def xrow(r, slot, dt=None):
        P.tag = f"dma r{r}"
        so = nso()
        P.s("s_add_u32", "m0", sM0, XT + slot * ROW)
        P.s("s_add_u32", so, sROW, (r - 1) * 86016)
        P.dma(voffX, srdX, so, [("XT", slot)], "nt"); arr(CFG["xdt"] if dt is None else dt)
    P.tag = "addr"
    wo4 = ra.q(); wo4b = ra.q(); sr2 = ra.q(); aSR, aSRb, aXRD = sr2[0], sr2[1], sr2[2]; cxq = ra.q(); aCX1, aCX2 = cxq[0], cxq[1]
    for j in range(3):
        P.v("v_add_u32", tmp2, 64 * j, lane)
        P.v("v_mul_u32_u24", tmp3, 43691, tmp2)
        P.v("v_lshrrev_b32", tmp3, 18, tmp3)
        P.v("v_mul_u32_u24", tmp4, 6, tmp3)
        P.v("v_sub_u32", tmp2, tmp2, tmp4)
        P.v("v_lshlrev_b32", tmp2, 4, tmp2)
        if j: P.v("v_subrev_u32", tmp2, 1024 * j, tmp2)
        if j == 1: P.v("v_cmp_lt_u32", "vcc", 15, tmp3)
        for w4, stride in ((wo4, 1152), (wo4b, 384)):
            P.v("v_mul_u32_u24", tmp4, stride, tmp3)
            P.v("v_add_u32", w4[j], tmp2, tmp4)
            if j == 1:
                P.v("v_add_u32", tmp4, 32 * stride, w4[1])
                P.v("v_cndmask_b32", w4[3], w4[1], tmp4, "vcc")
    P.s("s_mul_i32", sRW, sW, 3072)
    P.v("v_lshrrev_b32", tmp2, 2, lane)
    P.v("v_mul_u32_u24", tmp2, 96, tmp2)
    P.v("v_and_b32", tmp3, 3, lane)
    P.v("v_lshl_add_u32", tmp2, tmp3, 3, tmp2)
    P.v("v_add_u32", aSR, sRW, tmp2)
    P.v("v_add_u32", aSRb, SRB, aSR)
    def wdma(sl, ks, slot):
        P.tag = f"wload{sl}.{ks}"
        stride = 384 if sl == SL_O else 1152
        srd = srdWO if sl == SL_O else srdWQ
        col = 0 if sl == SL_O else SL_COL[sl]
        w4 = wo4b if sl == SL_O else wo4
        row0 = 48 * ks if ks < 4 else 96 * (ks - 4) + 32
        P.s("s_add_u32", "m0", sRW, LOC[slot])
        so = nso(); P.s("s_add_u32", so, sWOFF, col + row0 * stride)
        for j in range(3):
            if ks >= 4 and j == 2:
                so = nso(); P.s("s_add_u32", so, sWOFF, col + (row0 + 32) * stride)
            vo = w4[3] if (ks >= 4 and j == 1) else w4[j]
            P.dma(vo, srd, so, [("RG", slot)], "", off=1024 * j); arr(CFG["wdt"])
        return slot
    def wtr(sl, ks, slot):
        P.tag = f"wtr{sl}.{ks}"
        u = wunit(sl, ks)
        for ft in range(3):
            for hb in range(2):
                P.dsr("ds_read_b64_tr_b16", u[ft][2 * hb:2 * hb + 2], aSR if slot[0] == "X" else aSRb,
                      LOC[slot] - (0 if slot[0] == "X" else SRB) + hb * 1536 + 32 * ft, res=[("RG", slot)])
    for r in range(9, 16): xrow(r, r)
    clk[0] += CFG["w0"]
    units = [(sl, ks) for sl in (SL_K, SL_Q, SL_V, SL_O) for ks in range(6)]
    SLOTS = CFG["slots"].split("/")
    assert len(SLOTS) == 24
    wstate = dict(d=0, t=0)
    def wstep(upto_dma, upto_tr=0):
        while wstate["d"] < upto_dma:
            n_ = wstate["d"]
            prev = [k for k in range(n_) if SLOTS[k] == SLOTS[n_]]
            if prev:
                while wstate["t"] <= prev[-1]:
                    wtr(*units[wstate["t"]], SLOTS[wstate["t"]]); wstate["t"] += 1
            wdma(*units[n_], SLOTS[n_]); wstate["d"] += 1
        while wstate["t"] < upto_tr:
            wtr(*units[wstate["t"]], SLOTS[wstate["t"]]); wstate["t"] += 1
    firstO = SLOTS.index("O"); firstX = min(SLOTS.index("X0"), SLOTS.index("X1"))
    lastHO = max(k for k in range(24) if SLOTS[k] in ("H", "O"))
    wstep(firstO)
    P.tag = "addr"
    P.s("s_mov_b32", srdOUT[2], 19267584); P.s("s_mov_b32", srdOUT[3], "0x20000")
    P.s("s_mov_b32", sC, hex(f32bits(48 ** -0.5 * math.log2(math.e))))
    P.s("s_mov_b32", sINV, hex(f32bits(1.0 / 192)))
    P.s("s_mov_b32", sEPS, hex(f32bits(1e-5)))
    for m, val in ((sM1, 0x22222222), (sM2, 0x44444444), (sM3, 0x88888888)):
        P.s("s_mov_b32", m[0], hex(val)); P.s("s_mov_b32", m[1], hex(val))
    P.s("s_mov_b32", sLO[0], -1); P.s("s_mov_b32", sLO[1], 0)
    for k in range(4):
        P.s("s_mov_b32", sMX[k][0], hex(0x11111111 << k)); P.s("s_mov_b32", sMX[k][1], hex(0x11111111 << k))
    for k in range(4): P.v("v_mov_b32", ONES[k], "0x3f803f80")
    P.v("v_cmp_gt_u32", "vcc", 16, lane)
    P.v("v_cndmask_b32", ONES[4], 0, ONES[0], "vcc")
    P.v("v_mov_b32", ONES[5], ONES[4])
    mk = ra.q(); ms = ra.q(); e1 = ra.q(); e2 = ra.q()
    hm, u_, oc, sl_ = e1[0], e1[1], e1[2], e1[3]
    cvb, stb, h1, h2 = e2[0], e2[1], e2[2], e2[3]
    P.v("v_and_b32", tmp1, 1, t_)
    P.v("v_lshlrev_b32", tmp1, 4, tmp1)
    P.v("v_mov_b32", hm, "0xffff")
    P.v("v_lshlrev_b32", hm, tmp1, hm)
    P.v("v_and_b32", tmp1, 1, g_)
    P.v("v_lshlrev_b32", tmp1, 2, tmp1)
    P.v("v_lshrrev_b32", tmp2, 1, t_)
    P.v("v_sub_u32", tmp2, tmp2, tmp1)
    P.v("v_lshrrev_b32", tmp3, 2, t_)
    for j in range(4):
        P.v("v_cmp_eq_u32", "vcc", j, tmp2)
        P.v("v_cmp_eq_u32", sT3, j, tmp3)
        P.v("v_cndmask_b32", mk[j], 0, hm, "vcc")
        P.v("v_cndmask_b32", ms[j], 0, hm, sT3)
    P.v("v_and_b32", tmp1, 3, lane)
    P.v("v_mul_u32_u24", SIDX, "0x5555", tmp1)
    P.v("v_lshlrev_b32", tmp1, 1, g_)
    P.v("v_lshrrev_b32", tmp2, 1, t_)
    P.v("v_sub_u32", tmp2, tmp2, tmp1)
    P.v("v_and_b32", tmp3, hm, ONES[0])
    for j in range(2):
        P.v("v_cmp_eq_u32", "vcc", j, tmp2)
        P.v("v_cndmask_b32", IDENT[j], 0, tmp3, "vcc")
    P.v("v_add_u32", u_, 4, t_)
    P.v("v_bfe_u32", oc, u_, 3, 1)
    P.v("v_and_b32", sl_, 7, u_)
    P.v("v_and_b32", tmp1, 1, g_)
    P.v("v_lshlrev_b32", tmp1, 4, tmp1)
    P.v("v_add_u32", cvb, sWOFF, tmp1)
    P.s("s_add_u32", sTMP, sWOFF, OUTB)
    P.v("v_lshlrev_b32", tmp1, 3, g_)
    P.v("v_add_u32", stb, sTMP, tmp1)
    P.v("v_mul_u32_u24", h1, PIX, hi)
    P.v("v_mul_u32_u24", h2, 2 * ROW, hi)
    P.v("v_cmp_eq_u32", sT3, 7, sl_)
    for j in range(3):
        P.v("v_add_u32", tmp1, 2 * j, oc)
        P.v("v_add_u32", tmp2, 1, tmp1)
        P.v("v_cndmask_b32", tmp2, sl_, tmp2, sT3)
        P.v("v_cndmask_b32", tmp1, tmp1, 6, sT3)
        P.v("v_mul_u32_u24", tmp3, ROW, tmp1)
        P.v("v_mul_u32_u24", tmp4, PIX, tmp2)
        P.v("v_add3_u32", tmp3, tmp3, tmp4, cvb)
        P.v("v_add_u32", aCV1[j], tmp3, h1)
        P.v("v_add_u32", aCV2[j], tmp3, h2)
        P.v("v_mul_u32_u24", tmp3, 7 * OPX, tmp1)
        P.v("v_mul_u32_u24", tmp4, OPX, tmp2)
        P.v("v_add3_u32", aOW[j], tmp3, tmp4, stb)
    P.v("v_and_b32", tmp1, 3, lane)
    P.v("v_mul_u32_u24", tmp3, 3 * PIX, tmp1)
    P.v("v_add_u32", tmp3, PATCH - 3 * PIX, tmp3)
    P.v("v_mov_b32", tmp4, XT + 6 * ROW)
    P.v("v_cmp_eq_u32", "vcc", 0, tmp1)
    P.v("v_cndmask_b32", tmp3, tmp3, tmp4, "vcc")
    P.v("v_add3_u32", aCX1, tmp3, cvb, h1)
    P.v("v_add3_u32", aCX2, tmp3, cvb, h2)
    P.v("v_lshlrev_b32", tmp1, 4, lane)
    P.v("v_add_u32", aRD, HB, tmp1)
    P.s("s_lshl_b32", sTMP, sW, 10)
    P.v("v_add_u32", aW128, sTMP, aRD)
    P.s("s_add_u32", sT3[1], sTMP, HB + BC_OFF)
    P.v("v_lshlrev_b32", tmp2, 4, t_)
    P.v("v_add_u32", aBCR, sT3[1], tmp2)
    P.s("s_lshr_b32", sTMP, sW, 1)
    P.s("s_add_u32", sTMP, sTMP, 4)
    P.s("s_and_b32", sTMP2, sW, 1)
    P.s("s_lshl_b32", sTMP2, sTMP2, 3)
    P.s("s_lshl_b32", sT3[0], sTMP, 10)
    P.s("s_add_u32", sT3[0], sT3[0], sTMP2)
    P.v("v_add_u32", aW64, sT3[0], aRD)
    P.v("v_and_b32", tmp3, 3, lane)
    P.v("v_lshl_add_u32", tmp2, g_, 2, tmp3)
    P.v("v_lshlrev_b32", tmp2, 4, tmp2)
    P.v("v_add_u32", aXRD, SM, tmp2)
    P.s("s_lshl_b32", sT3[0], sW, 8)
    P.v("v_add_u32", aXW128, sT3[0], aXRD)
    P.s("s_lshl_b32", sT3[0], sTMP, 8)
    P.s("s_add_u32", sT3[0], sT3[0], sTMP2)
    P.v("v_add_u32", aXW64, sT3[0], aXRD)
    P.v("v_lshlrev_b32", tmp2, 7, t_)
    P.v("v_lshl_add_u32", tmp3, g_, 5, tmp2)
    P.v("v_add_u32", aSTR, ST, tmp3)
    P.s("s_lshl_b32", sT3[0], sW, 3)
    P.s("s_add_u32", sT3[0], sT3[0], ST)
    P.v("v_add_u32", tmp2, sT3[0], tmp2)
    P.v("v_lshrrev_b32", tmp3, 2, t_)
    P.v("v_cmp_eq_u32", "vcc", tmp3, g_)
    P.v("v_mov_b32", tmp3, DUMMY)
    P.v("v_cndmask_b32", aSTW, tmp3, tmp2, "vcc")
    P.s("s_mul_i32", sTMP, sW, 40)
    P.v("v_add_u32", tmp1, sTMP, lane)
    P.v("v_min_u32", tmp2, 167, tmp1)
    P.v("v_mul_u32_u24", tmp3, 2731, tmp2)
    P.v("v_lshrrev_b32", tmp3, 16, tmp3)
    P.v("v_add_u32", tmp3, tmp3, tmp2)
    P.v("v_lshlrev_b32", tmp3, 4, tmp3)
    P.v("v_add_u32", aOR, OUTB, tmp3)
    P.s("s_mul_i32", sTMP2, sCOL, 7 * 384)
    P.v("v_lshlrev_b32", tmp2, 4, tmp1)
    P.v("v_add_u32", tmp2, sTMP2, tmp2)
    P.s("s_add_u32", sTMP, sW, 1)
    P.s("s_and_b32", sTMP, sTMP, 4)
    P.s("s_lshl_b32", sTMP, sTMP, 1)
    P.s("s_add_u32", sTMP, sTMP, 40)
    P.v("v_bfrev_b32", tmp4, 2)
    P.v("v_cmp_gt_u32", "vcc", sTMP, lane)
    P.v("v_cndmask_b32", voffO, tmp4, tmp2, "vcc")
    P.v("v_cmp_lt_u32", "vcc", 23, tmp1)
    P.v("v_cndmask_b32", voffO6, tmp4, voffO, "vcc")
    P.tag = "convA"
    for ct in range(3):
        for p in range(3):
            f = cA(ct, p)
            if p == 0: P.v("v_cndmask_b32", f[3], f[3], ONES[0], sLO)
            for j in range(4): P.v("v_and_b32", f[j], f[3], (mk if p == 0 else ms)[j])

    PAIR_OFF = [0, ROW, ROW + PIX, 2 * ROW, 2 * PIX]

    def pack3(acc, pd=None):
        a, b, c = acc
        P.v("v_cvt_pk_bf16_f32", a[0], a[0], a[1]); P.v("v_cvt_pk_bf16_f32", a[1], a[2], a[3])
        P.v("v_cvt_pk_bf16_f32", a[2], b[0], b[1]); P.v("v_cvt_pk_bf16_f32", a[3], b[2], b[3])
        if pd is None: pd = c[0:2]
        P.v("v_cvt_pk_bf16_f32", pd[0], c[0], c[1]); P.v("v_cvt_pk_bf16_f32", pd[1], c[2], c[3])
        return a, pd

    def conv_tile(win, tt, stat_tile, xp=None):
        P.tag = f"conv{win}.{tt}"
        acc = [ra.q() for _ in range(3)]
        if win == "X":
            a1, a2, base = aCX1, aCX2, 0
            res = [("XT", r) for r in (6, 7, 8)] + [("PATCH",)]
        else:
            a1, a2, base = aCV1[tt], aCV2[tt], (win & 1) * 7 * ROW
            r0 = (win & 1) * 7
            res = [("XT", r0 + r) for r in sorted(set(list(range(2 * tt, 2 * tt + 4)) + [6, 7, 8]))]
        for ct in range(3):
            f = ra.q()
            P.dsr("ds_read_b128", f, a1, base + PAIR_OFF[2] + 32 * ct, res=res)
            P.mfma32(acc[ct], cA(ct, 0), f, 0)
        for sp, (pa, pb) in enumerate(((0, 1), (3, 4))):
            for ct in range(3):
                f = ra.o()
                P.dsr("ds_read_b128", f[0:4], a1, base + PAIR_OFF[pa] + 32 * ct, res=res)
                P.dsr("ds_read_b128", f[4:8], a2 if pb == 4 else a1, base + PAIR_OFF[pb] + 32 * ct, res=res)
                P.smf(acc[ct], cA(ct, 1 + sp), f, SIDX)
        P.tag = f"stat{win}.{tt}"
        xq = ra.q()
        if xp is None: xp = ra.p()
        for k in range(4): P.v("v_cvt_pk_bf16_f32", xq[k], acc[k >> 1][2 * (k & 1)], acc[k >> 1][2 * (k & 1) + 1])
        for k in range(2): P.v("v_cvt_pk_bf16_f32", xp[k], acc[2][2 * k], acc[2][2 * k + 1])
        if win == "X":
            P.dsw("ds_write_b128", aXW128, xq, X0X_OFF, res=[("X0X",)])
            P.dsw("ds_write_b64", aXW64, xp, X0X_OFF, res=[("X0X",)])
        sm, gr = ra.q(), ra.q()
        P.mfma32(gr, xq, xq, 0)
        P.mfma32(sm, ONES[0:4], xq, 0)
        P.mfma16(gr, xp, xp, gr)
        P.mfma16(sm, ONES[0:2], xp, sm)
        ra.rel(xq, xp)
        P.v("v_cndmask_b32", gr[0], gr[0], gr[1], sM1)
        P.v("v_cndmask_b32", gr[0], gr[0], gr[2], sM2)
        P.v("v_cndmask_b32", sm[1], gr[0], gr[3], sM3)
        P.dsw("ds_write_b64", aSTW, sm[0:2], 32 * stat_tile, res=[("ST",)])
        return acc, (xq, xp)

    def norm_head(win, ntiles):
        P.tag = f"fin{win}"
        a, b = ra.q(), ra.q()
        P.dsr("ds_read_b128", a, aSTR, 0, res=[("ST",)])
        P.dsr("ds_read_b128", b, aSTR, 16, res=[("ST",)])
        P.v("v_add_f32", a[0], a[0], a[2]); P.v("v_add_f32", a[1], a[1], a[3])
        P.v("v_add_f32", b[0], b[0], b[2]); P.v("v_add_f32", b[1], b[1], b[3])
        P.v("v_add_f32", a[0], a[0], b[0]); P.v("v_add_f32", a[1], a[1], b[1])
        P.v("v_mul_f32", a[2], sINV, a[0])
        P.v("v_mul_f32", a[1], sINV, a[1])
        P.v("v_fma_f32", a[1], ("-%s", a[2]), a[2], a[1])
        P.v("v_max_f32", a[1], 0, a[1])
        P.v("v_add_f32", a[1], sEPS, a[1])
        P.v("v_rsq_f32", a[0], a[1])
        P.v("v_mul_f32", a[1], ("-%s", a[2]), a[0])
        P.dsw("ds_write_b64", aW128, a[0:2], BC_OFF, res=[("BC",)])
        prs = [b[0:2], b[2:4], a[2:4], a[0:2]]
        for k in range(ntiles): P.dsr("ds_read_b64", prs[k], aBCR, 256 * k, res=[("BC",)])
        if ntiles < 4: ra.rel(prs[3])
        return prs
    def norm_tile(kind, tt, acc, pr):
        P.tag = f"norm{kind}.{tt}"
        for q in range(12): P.v("v_fma_f32", acc[q >> 2][q & 3], acc[q >> 2][q & 3], pr[0], pr[1])
        ra.rel(pr)
        hq, hp = pack3(acc)
        if kind == "X":
            P.dsw("ds_write_b128", aXW128, hq, HX_OFF, res=[("HX",)])
            P.dsw("ds_write_b64", aXW64, hp, HX_OFF, res=[("HX",)])
        else:
            o = H_OFF[kind & 1] + tt * 6144
            P.dsw("ds_write_b128", aW128, hq, o, res=[("H", kind & 1)])
            P.dsw("ds_write_b64", aW64, hp, o, res=[("H", kind & 1)])
        ra.rel(hq, hp)

    def hfrag(f, win, tt, ks):
        if tt == "X": P.dsr("ds_read_b128", f, aXRD, HX_OFF + 256 * ks, res=[("HX",)])
        else: P.dsr("ds_read_b128", f, aRD, H_OFF[win & 1] + tt * 6144 + 1024 * ks, res=[("H", win & 1)])

    def gemm(win, tt, parts, fr, VA, pd=None):
        P.tag = f"{parts}{win}.{tt}"
        accs = {p: [ra.q() for _ in range(3)] for p in parts}
        for ks in range(6):
            f = ra.q(); hfrag(f, win, tt, ks)
            for p in parts:
                w = wunit({"K": SL_K, "V": SL_V, "Q": SL_Q}[p], ks)
                for dt in range(3):
                    d = accs[p][dt]
                    if p == "V": P.mfma32(d, f, w[dt], d if ks else 0)
                    else: P.mfma32(d, w[dt], f, d if ks else 0)
        out = {}
        for p in parts:
            if p == "V":
                for dt in range(3):
                    d = accs[p][dt]
                    if tt == 0:
                        VA.append(d); dst = d[0:2]
                    elif tt == 1: dst = VA[dt][2:4]
                    elif tt == 2: dst = VB[4 * dt:4 * dt + 2]
                    else: dst = VB[4 * dt + 2:4 * dt + 4]
                    P.v("v_cvt_pk_bf16_f32", dst[0], d[0], d[1]); P.v("v_cvt_pk_bf16_f32", dst[1], d[2], d[3])
                    if tt != 0: ra.rel(d)
            elif tt == "X":
                dst = KX if p == "K" else QX
                for dt in range(3):
                    d = accs[p][dt]
                    P.v("v_cvt_pk_bf16_f32", dst[2 * dt], d[0], d[1]); P.v("v_cvt_pk_bf16_f32", dst[2 * dt + 1], d[2], d[3])
                    ra.rel(d)
                out[p] = (dst[0:4], dst[4:6])
            else:
                out[p] = pack3(accs[p], pd); out['hi'] = accs[p][2][2:4]
        return out

    def scores(win, qt, Ks, qp):
        P.tag = f"S{win}.{qt}"
        s = [ra.q() for _ in range(4)]
        for kt in range(4): P.mfma32(s[kt], Ks[kt][0], qp[0], 0)
        for kt in range(4): P.mfma16(s[kt], Ks[kt][1], qp[1], s[kt])
        if qt != "X": ra.rel(*qp)
        return s
    def softmax(win, qt, s):
        P.tag = f"sm{win}.{qt}"
        sx = s[3][win]
        fre = [s[3][k] for k in range(4) if k != win]
        m, t2 = fre[0], fre[1]
        vals = [s[k >> 2][k & 3] for k in range(12)] + [sx]
        P.v("v_max3_f32", m, vals[0], vals[1], vals[12])
        P.v("v_max3_f32", t2, vals[2], vals[3], vals[4])
        P.v("v_max3_f32", m, m, vals[5], vals[6])
        P.v("v_max3_f32", t2, t2, vals[7], vals[8])
        P.v("v_max3_f32", m, m, vals[9], vals[10])
        P.v("v_max3_f32", m, m, t2, vals[11])
        P.v("v_mov_b32", t2, m)
        P.swap("v_permlane32_swap_b32", m, t2)
        P.v("v_max_f32", m, m, t2)
        P.v("v_mov_b32", t2, m)
        P.swap("v_permlane16_swap_b32", m, t2)
        P.v("v_max_f32", m, m, t2)
        P.v("v_mul_f32", m, sC, m)
        for x in vals:
            P.v("v_fma_f32", x, x, sC, ("-%s", m))
        for x in vals: P.v("v_exp_f32", x, x)
        a, b, c = s[0], s[1], s[2]
        P.v("v_cvt_pk_bf16_f32", a[0], a[0], a[1]); P.v("v_cvt_pk_bf16_f32", a[1], a[2], a[3])
        P.v("v_cvt_pk_bf16_f32", a[2], b[0], b[1]); P.v("v_cvt_pk_bf16_f32", a[3], b[2], b[3])
        P.v("v_cvt_pk_bf16_f32", c[0], c[0], c[1]); P.v("v_cvt_pk_bf16_f32", c[1], c[2], c[3])
        if win & 1: P.v("v_cvt_pk_bf16_f32", c[2 + (win >> 1)], 0, sx)
        else: P.v("v_cvt_pk_bf16_f32", c[2 + (win >> 1)], sx, 0)
        P.v("v_mov_b32", c[3 - (win >> 1)], 0)
        ra.rel(b, s[3])
        return a, c
    def pv(win, qt, pp, VA):
        P.tag = f"PV{win}.{qt}"
        pa, pb = pp
        oa = [ra.q() for _ in range(3)]; ls = ra.q()
        P.mfma32(ls, ONES[0:4], pa, 0)
        for dt in range(3): P.mfma32(oa[dt], VA[dt], pa, 0)
        P.mfma32(ls, ONES[2:6], pb, ls)
        for dt in range(3): P.mfma32(oa[dt], VB[4 * dt:4 * dt + 4], pb, oa[dt])
        ra.rel(pa, pb)
        return oa, ls
    def onorm(win, qt, ol):
        P.tag = f"on{win}.{qt}"
        oa, ls = ol
        P.v("v_rcp_f32", ls[0], ls[0])
        for q in range(12): P.v("v_mul_f32", oa[q >> 2][q & 3], oa[q >> 2][q & 3], ls[0])
        ra.rel(ls)
        oq, op = pack3(oa)
        if qt == "X":
            P.begin_bundle()
            P.s("s_mov_b64", "exec", sMX[win])
            P.dsw("ds_write_b128", aXW128, oq, OX_OFF, res=[("OX",)])
            P.dsw("ds_write_b64", aXW64, op, OX_OFF, res=[("OX",)])
            P.s("s_mov_b64", "exec", -1)
            P.end_bundle()
        else:
            o = O_OFF + qt * 6144
            P.dsw("ds_write_b128", aW128, oq, o, res=[("O",)])
            P.dsw("ds_write_b64", aW64, op, o, res=[("O",)])
        ra.rel(oq, op)

    def proj_init(win, tt, x0):
        P.tag = f"proj{win}.{tt}"
        if tt == "X":
            xq, xp = ra.q(), ra.p()
            P.dsr("ds_read_b128", xq, aXW128, X0X_OFF, res=[("X0X",)])
            P.dsr("ds_read_b64", xp, aXW64, X0X_OFF, res=[("X0X",)])
        else: xq, xp = x0
        acc = [ra.q() for _ in range(3)]
        for ct, x in enumerate((xq[0:2], xq[2:4], xp)): P.mfma16(acc[ct], IDENT, x, 0)
        return acc
    def proj_tile(win, tt, acc, axrd=None, astx=None):
        P.tag = f"proj{win}.{tt}"
        for ks in range(6):
            f = ra.q()
            if tt == "X": P.dsr("ds_read_b128", f, axrd, OX_OFF + 256 * ks, res=[("OX",)])
            else: P.dsr("ds_read_b128", f, aRD, O_OFF + tt * 6144 + 1024 * ks, res=[("O",)])
            w = wunit(SL_O, ks)
            for ct in range(3): P.mfma32(acc[ct], w[ct], f, acc[ct])
        for ct in range(3):
            d = acc[ct]
            P.v("v_cvt_pk_bf16_f32", d[0], d[0], d[1]); P.v("v_cvt_pk_bf16_f32", d[1], d[2], d[3])
            if tt == "X": P.vst("buffer_store_dwordx2", d[0:2], astx, srdOUT, sROW, 32 * ct, CFG["stflags"])
            else: P.dsw("ds_write_b64", aOW[tt], d[0:2], 32 * ct, res=[("OUT",)])
    def out_rows(win, rows):
        P.tag = f"out{win}"
        for r in rows:
            f = ra.q()
            P.dsr("ds_read_b128", f, aOR, r * 7 * OPX, res=[("OUT",)])
            so = nso(); P.s("s_add_u32", so, sROW, (win * 7 + r) * 86016)
            P.vst("buffer_store_dwordx4", f, voffO6 if r == 6 else voffO, srdOUT, so, 0, CFG["stflags"])

    def bar(tag, res):
        P.tag = tag; P.bar(res)
    XTr = lambda a, b: [("XT", r) for r in range(a, b)]
    RGr = [("RG", k) for k in LOC]
    fr = None

    def conv3(win):
        pq = ra.q()
        return [lambda: conv_tile(win, 0, 0, pq[0:2]), lambda: conv_tile(win, 1, 1, pq[2:4]), lambda: conv_tile(win, 2, 2)]
    bar("B0", XTr(0, 9) + [("PATCH",)])
    CV = {}
    CV[0] = [f() for f in conv3(0)]
    cvx = conv_tile("X", 0, 3)
    bar("B1", [("ST",), ("PATCH",), ("O",), ("RG", "O")])
    wstep(firstX, max(lastHO + 1, 6))
    prs = norm_head(0, 4)
    for tt in range(3): norm_tile(0, tt, CV[0][tt][0], prs[tt])
    norm_tile("X", 0, cvx[0], prs[3])
    bar("B2", [("H", 0), ("HX",), ("ST",)] + XTr(9, 16))
    cf = conv3(1); CV[1] = []
    KXp, QXp = (KX[0:4], KX[4:6]), (QX[0:4], QX[4:6])
    for win in range(4):
        nxt = win + 1 if win < 3 else None
        prv = win - 1 if win else None
        for tt in range(3):
            if prv is not None:
                pa = pacc0 if tt == 0 else proj_init(prv, tt, CV[prv][tt][1])
                proj_tile(prv, tt, pa)
            if nxt is not None and tt >= len(CV[nxt]): CV[nxt].append(cf[tt]())
        VA = []
        if win == 0 or win == 3:
            k0 = gemm(win, 0, "K", fr, VA)
        bar(f"Bs{win}", [("ST",), ("O",), ("OUT",)] + (XTr(0, 16) + [("RG", k) for k in ("H", "O", "X0", "X1")] + [("H", 1)] if win == 0 else []) + (XTr(9, 16) if win == 1 else []))
        if win == 0:
            wstep(CFG["rf_at"])
            for r in range(9): xrow(14 + r, r, dt=90)
            wstep(24, 24)
        if nxt is not None: prs = norm_head(nxt, 3)
        if not (win == 0 or win == 3): k0 = gemm(win, 0, "K", fr, VA)
        if prv is not None: out_rows(prv, range(0, 4))
        if nxt is not None: norm_tile(nxt, 0, CV[nxt][0][0], prs[0])
        k1 = gemm(win, 1, "K", fr, VA, k0["hi"])
        if nxt is not None: norm_tile(nxt, 1, CV[nxt][1][0], prs[1])
        if prv is not None: out_rows(prv, range(4, 7))
        k2 = gemm(win, 2, "K", fr, VA)
        if nxt is not None: norm_tile(nxt, 2, CV[nxt][2][0], prs[2])
        Ks = [k0["K"], k1["K"], k2["K"], KXp]; qpd = k2["hi"]
        if win == 0: gemm(0, "X", "KQ", fr, VA)
        xfirst = win == 3
        if xfirst: sX = scores(win, "X", Ks, QXp)
        q0 = gemm(win, 0, "QV", fr, VA, qpd)["Q"]
        if xfirst: pX = softmax(win, "X", sX)
        s0 = scores(win, 0, Ks, q0)
        q1 = gemm(win, 1, "QV", fr, VA, qpd)["Q"]
        p0 = softmax(win, 0, s0)
        s1 = scores(win, 1, Ks, q1)
        q2 = gemm(win, 2, "QV", fr, VA, qpd)["Q"]
        if win == 0:
            gemm(0, "X", "V", fr, VA)
            P.tag = "vx"
            P.v("v_cmp_gt_u32", "vcc", HB + 256, aRD)
            for dt in range(3):
                for k in range(2):
                    r = VB[4 * dt + 2 + k]; P.v("v_cndmask_b32", r, 0, r, "vcc")
        p1 = softmax(win, 1, s1)
        s2 = scores(win, 2, Ks, q2)
        n2 = win + 2 if (win + 2 < 4) else None
        nh = CFG["hoist"] if (n2 is not None and win >= 1) else 0
        if n2 is not None: cf = conv3(n2); CV[n2] = []
        if xfirst: onorm(win, "X", pv(win, "X", pX, VA))
        o0 = pv(win, 0, p0, VA)
        if not xfirst: sX = scores(win, "X", Ks, QXp)
        p2 = softmax(win, 2, s2)
        onorm(win, 0, o0)
        o1 = pv(win, 1, p1, VA)
        if not xfirst: pX = softmax(win, "X", sX)
        onorm(win, 1, o1)
        o2 = pv(win, 2, p2, VA)
        if not xfirst: oX = pv(win, "X", pX, VA)
        onorm(win, 2, o2)
        if not xfirst: onorm(win, "X", oX)
        if win == 3:
            P.tag = "xaddr"
            xa = ra.q(); axrd, astx, e1_, e2_ = xa[0], xa[1], xa[2], xa[3]
            P.s("s_lshl_b32", sT3[0], sW, 8)
            P.v("v_subrev_u32", axrd, sT3[0], aXW128)
            P.v("v_subrev_u32", e1_, HB, aRD)
            P.v("v_bfe_u32", e2_, e1_, 4, 4)
            P.v("v_cmp_gt_u32", "vcc", 4, e2_)
            P.v("v_mul_u32_u24", e2_, 7 * 86016, e2_)
            P.v("v_lshrrev_b32", e1_, 8, e1_)
            P.v("v_lshl_add_u32", e1_, e1_, 3, e2_)
            P.s("s_mul_i32", sTMP, sCOL, 7 * 384)
            P.s("s_add_u32", sTMP, sTMP, sWOFF)
            P.s("s_add_u32", sTMP, sTMP, 6 * 86016)
            P.v("v_add_u32", e1_, sTMP, e1_)
            P.v("v_bfrev_b32", e2_, 2)
            P.v("v_cndmask_b32", astx, e2_, e1_, "vcc")
        pacc0 = proj_init(win, 0, CV[win][0][1])
        bar(f"Bo{win}", [("O",), ("ST",), ("H", 0), ("H", 1), ("OX",), ("OUT",)] + (XTr(0, 16) + RGr if win == 0 else []))
        if win == 0:
            clk[0] = 0
            for r in range(9, 16): xrow(14 + r, r)
    for tt in range(3):
        pa = pacc0 if tt == 0 else proj_init(3, tt, CV[3][tt][1])
        proj_tile(3, tt, pa)
    pa = proj_init(3, "X", None)
    bar("Bz", [("OUT",)])
    out_rows(3, range(7))
    proj_tile(3, "X", pa, axrd, astx)
    return P, ra, nfixed

def emit(path, mode="idx", stamps=False, trace=None, **kw):
    P, ra, nfixed = gen(stamps)
    head = []
    late = [(set(V(4 * k, 4).regs()), [4 * k]) for k in range(5)] + [(set(convA.regs()), [convA.i + 4 * k for k in range(9)])]
    skw = {k: CFG[k] for k in ("kahead", "window", "merge", "reserve", "vm_gap", "l2lat", "inflight") if k in CFG}
    lines, st, marks = schedule4(P.ins, list(range(20, NPOOL, 4)), late, ra.octs, nfixed=nfixed, t0=250, trace=trace, **skw)
    print("sim", st, marks)
    cnt = {}
    for i in P.ins:
        for x in flat(i): cnt[x.kind] = cnt.get(x.kind, 0) + 1
    print(cnt)
    if stamps:
        sv = SPARE
        nl = []; k = 0
        def stamp(k):
            return ["    s_memtime s[82:83]", "    s_waitcnt lgkmcnt(0)", "    s_sub_u32 s82, s82, s78", f"    v_writelane_b32 v{sv}, s82, {k}"]
        nl.append(lines[0]); nl.append(f"    v_mov_b32 v{sv}, 0")
        for l in lines[1:]:
            if "s_barrier" in l:
                nl.append(l); nl += stamp(k); k += 1
            else: nl.append(l)
        nl += stamp(k)
        nl += ["    s_waitcnt vmcnt(0)"] + stamp(k + 1)
        nl += ["    s_memrealtime s[82:83]", "    s_waitcnt lgkmcnt(0)", f"    v_writelane_b32 v{sv}, s80, 62", f"    v_writelane_b32 v{sv}, s82, 63",
               "    s_mov_b32 s74, 0x10000000", "    s_mov_b32 s75, 0x20000",
               "    v_mbcnt_lo_u32_b32 v0, -1, 0", "    v_mbcnt_hi_u32_b32 v0, -1, v0", "    v_lshlrev_b32 v0, 2, v0",
               "    s_lshl_b32 s82, s2, 2", "    s_add_u32 s82, s82, s36", "    s_lshl_b32 s82, s82, 8",
               f"    buffer_store_dword v{sv}, v0, s[72:75], s82 offen"]
        lines = nl
    lines = [l.replace("s_getpc_b64 s[88:89]", "s_getpc_b64 s[88:89]\nL_pc:").replace("CODE_REMAIN", "L_end-L_pc") for l in lines]
    src = open("cdna_kernels/" + NAME + ".s.ref").read().split("\n")
    hdr = [l for l in src if l.startswith(";") and "@launch" not in l]
    txt = "\n".join(hdr) + f"\n; @launch grid=(256,1,1) block=(256,1,1) lds={LDS_TOTAL}\n"
    txt += f""".amdgcn_target "amdgcn-amd-amdhsa--gfx950"
.text
.globl {NAME}_kernel
.p2align 8
.type {NAME}_kernel,@function
{NAME}_kernel:
""" + "\n".join(head) + "\n" + "\n".join(lines) + f"""
L_end:
    s_endpgm
.section .rodata,"a"
.p2align 6
.amdhsa_kernel {NAME}_kernel
  .amdhsa_next_free_vgpr 512
  .amdhsa_next_free_sgpr 96
  .amdhsa_accum_offset 256
  .amdhsa_group_segment_fixed_size 0
  .amdhsa_kernarg_size 56
  .amdhsa_user_sgpr_count 2
  .amdhsa_user_sgpr_kernarg_segment_ptr 1
  .amdhsa_system_sgpr_workgroup_id_x 1
.end_amdhsa_kernel
"""
    open(path, "w").write(txt)

if __name__ == "__main__":
    import argparse
    ap = argparse.ArgumentParser()
    ap.add_argument("-o", default="cdna_kernels/" + NAME + ".s")
    ap.add_argument("--mode", default="idx")
    ap.add_argument("--stamps", action="store_true")
    ap.add_argument("--trace", default="")
    ap.add_argument("--cfg", default="")
    a = ap.parse_args()
    for kv in a.cfg.split(","):
        if kv:
            k, v = kv.split("="); CFG[k] = int(v) if v.lstrip("-").isdigit() else v
    tr = [] if a.trace else None
    emit(a.o, a.mode, a.stamps, tr)
    if a.trace:
        open(a.trace, "w").write("\n".join(f"{t} {tag:12s} {txt}" for t, txt, tag in tr))
```

```python
import re, bisect
from sched import *
import sched
from sched2 import hazard_need, wait_need

class PI:
    __slots__ = ("txt", "kind", "rd", "wr", "res_rd", "res_wr", "srcc", "ab", "data", "tag")

QRE = re.compile(r"\bq\[(\d+):(\d+)\]|\bq(\d+)\b")

def vq_of(i):
    s = set()
    for x in flat(i):
        for r in x.rd | x.wr:
            if r[0] == "q": s.add(int(r[1:]) >> 2)
    return s

def schedule5(ins, pool, late_pool=None, octs=(), vm_gap=66, merge=120, t0=480, inflight=11.5, kahead=12, window=400,
              reserve=0, l2lat=700, nfixed=0, st_gap=130, w_gap=80, w_wt=1.5, mslack=10, ldsq=120, ldslat=75, dmaf=1.4, dmaw=2.0, accres=1, fslack=0, tagoff=None, vwin=400, kscan=60, bw=0.25, trace=None):
    build_dag(ins)
    n = len(ins)
    vqs = [vq_of(i) for i in ins]
    octs = set(octs)
    mate = {}
    for a in octs: mate[a] = a + 1; mate[a + 1] = a
    for k in range(n):
        vqs[k] = vqs[k] | {mate[v] for v in vqs[k] if v in mate}
    users = {}
    for i in ins:
        for v in vqs[i.idx]: users.setdefault(v, []).append(i.idx)
    remaining = {v: len(u) for v, u in users.items()}
    phys = {}
    free = [(-1000 + k, b) for k, b in enumerate(pool)]
    fclock = [0]
    late_left = [[set(i.idx for i in ins if (i.rd | i.wr) & rs), qs] for rs, qs in (late_pool or [])]
    isM = [(not i.sub) and i.kind in ("mfma", "smf") for i in ins]
    isVM = [any(x.kind in ("vld", "vst", "dma") for x in flat(i)) for i in ins]
    isDS = [any(x.kind in ("dsr", "dsw") for x in flat(i)) for i in ins]
    isW = [any(x.kind == "dsw" for x in flat(i)) for i in ins]
    vdst = [any(r[0] == 'q' for r in i.wr) for i in ins]
    urgent = [i.tag.startswith(('wtr', 'wload', 'dma')) for i in ins]
    vec_free = 0; lds_free = 0; ds_done = 0; dw_free = 0; valu_end = -100; last_kind = ""
    feed = {}
    for i in ins:
        if i.kind == "dsr":
            c = [s_ for (s_, l) in i.succs if isM[s_] and (ins[s_].ab & i.wr)]
            if c: feed[i.idx] = min(c)
    unM = [i.idx for i in ins if isM[i.idx]]
    unI = list(range(n))
    for i in ins:
        i.prio = i.idx - i.bias + (tagoff.get(i.tag, 0) if tagoff else 0)
        i.npred = len(i.preds); i.rt = 0
    unM.sort(key=lambda k: (ins[k].prio, k))
    issued = [None] * n
    gate = [-1] * n
    for i in ins:
        gte = -1
        for p in i.preds:
            gte = max(gte, p if ins[p].kind == "bar" else gate[p])
        gate[i.idx] = gte
    avail = [i for i in ins if i.npred == 0]
    st = dict(t=t0, pos=0, idle=0, nop=0, wait=0, minfree=99)
    lines = []; hist = []; lg = []; vm = []; marks = []
    mf_free = 0; vm_free = 0; vmq = []
    def mapname(r, tmp):
        if r[0] != "q": return r
        k = int(r[1:]); b = phys.get(k >> 2, tmp.get(k >> 2))
        return f"v{b + (k & 3)}"
    def conv(x, tmp):
        p = PI()
        def sub(m):
            if m.group(3) is not None:
                return mapname("q" + m.group(3), tmp)
            a, b = int(m.group(1)), int(m.group(2))
            base = phys.get(a >> 2, tmp.get(a >> 2))
            return f"v[{base + (a & 3)}:{base + (a & 3) + b - a}]"
        p.txt = QRE.sub(sub, x.txt); p.kind = x.kind; p.tag = x.tag
        p.rd = {mapname(r, tmp) for r in x.rd}; p.wr = {mapname(r, tmp) for r in x.wr}
        p.res_rd = x.res_rd; p.res_wr = x.res_wr
        p.srcc = tuple(mapname(r, tmp) for r in x.srcc); p.ab = {mapname(r, tmp) for r in x.ab}
        p.data = {mapname(r, tmp) for r in x.data}
        return p
    def tentative(i):
        need = sorted(v for v in vqs[i.idx] if v not in phys)
        if not need: return {}
        fd = {b: tm for tm, b in free}
        out = {}
        for v in need:
            if v in octs:
                c = [(max(fd[b], fd[b + 4]), b) for b in fd if b % 8 == 0 and b + 4 in fd]
                if not c: c = [(max(fd[b], fd[b + 4]), b) for b in fd if b + 4 in fd]
                if not c: return None
                b = min(c)[1]; out[v] = b; out[v + 1] = b + 4; del fd[b]; del fd[b + 4]
        for v in need:
            if v in mate: continue
            if not fd: return None
            recent = fclock[0] - 2
            c = [((b ^ 4) in fd and oct_soon[0], tm > recent, tm, b) for b, tm in fd.items()]
            b = min(c, key=lambda x: (x[1], x[0], x[2]))[3]; out[v] = b; del fd[b]
        return out
    oct_soon = [True]
    def emit_wait(nl, nv):
        nonlocal lg, vm
        t = st["t"]; w = []
        if nv is not None:
            while nv > 0 and vm[len(vm) - nv][1] + 400 <= t: nv -= 1
            nv = min(nv, 63); w.append(f"vmcnt({nv})"); vm = vm[len(vm) - nv:] if nv else []
        if nl is not None:
            while nl > 0 and lg[len(lg) - nl][1] + mslack <= t: nl -= 1
            nl = min(nl, 15); w.append(f"lgkmcnt({nl})"); lg = lg[len(lg) - nl:] if nl else []
        lines.append("    s_waitcnt " + " ".join(w))
        if trace is not None: trace.append((t, "wait " + " ".join(w), ""))
        st["pos"] += 1; st["t"] += 4; st["wait"] += 1
    def dma_busy(t): return any(a > t and a < t + 300 and w >= 1 for a, w in vmq[-16:])
    def vm_block():
        t = st["t"]
        pend = sorted([x for x in vmq if x[0] > t])
        tot = sum(w for _, w in pend); e = t
        for a, w in pend:
            if tot <= inflight: break
            tot -= w; e = a
        return e
    peak_cache = {}
    def peaks(upto):
        if peak_cache.get("v") is not None and peak_cache["upto"] >= upto: return peak_cache["v"]
        cur = 0; pk = 0; seen = set(); rem = {}
        out = {}
        for idx in unI:
            if idx > upto: break
            out[idx] = pk
            for v in vqs[idx]:
                if v not in phys and v not in seen:
                    seen.add(v); cur += 1
            pk = max(pk, cur)
            for v in vqs[idx]:
                r = rem.get(v, remaining[v]) - 1; rem[v] = r
                if r == 0: cur -= 1
        peak_cache["v"] = out; peak_cache["upto"] = upto
        return out
    def can_alloc(i):
        need = sum(1 for v in vqs[i.idx] if v not in phys)
        if need == 0: return True
        if need > len(free): return False
        if tentative(i) is None: return False
        if i.idx == unI[0]: return True
        pk = peaks(maxidx)[i.idx]
        return len(free) - need >= pk + (reserve if pk else 0)
    while avail:
        t = st["t"]
        vb = None
        base_idx = None
        for idx in unI:
            if not isVM[idx] and ins[idx].kind != "salu" and not ins[idx].tag.startswith("wtr"):
                base_idx = idx; break
        if base_idx is None: base_idx = unI[0]
        lim = base_idx + window
        cand = [i for i in avail if i.prio <= lim or (i.prio <= base_idx + vwin and all(v in phys for v in vqs[i.idx]))]
        if not cand: cand = [min(avail, key=lambda i: i.idx)]
        if unI[0] < nfixed: cand = [ins[unI[0]]]
        maxidx = max(i.idx for i in cand)
        def eff(i):
            nonlocal vb
            e = i.rt
            if isM[i.idx]: e = max(e, mf_free)
            if isVM[i.idx]:
                if vb is None: vb = vm_block()
                e = max(e, vm_free, vb)
            if isDS[i.idx] and len(lg) >= 14: e = max(e, lg[0][1] + mslack)
            if isDS[i.idx]: e = max(e, lds_free - ldsq)
            if isW[i.idx]: e = max(e, dw_free)
            return e
        rank = {}
        def mk_rank():
            k = 0; blocked = set()
            for m in unM[:kscan]:
                gte = gate[m]
                blk = gte >= 0 and (issued[gte] is None)
                if not blk:
                    for p in ins[m].preds:
                        if issued[p] is None and (ins[p].kind in VALU_KINDS or p in blocked): blk = True; break
                rank[m] = k
                if blk: blocked.add(m); k += bw
                else: k += 1
        def near(i):
            if not rank: mk_rank()
            return rank.get(feed[i.idx], 999) <= kahead
        ok = []
        for i in cand:
            if i.idx in feed and vdst[i.idx] and not near(i): continue
            if can_alloc(i): ok.append(i)
        if not ok:
            ok = [i for i in cand if can_alloc(i)]
        if not ok:
            o_ = min(avail, key=lambda i: i.idx)
            maxidx = max(maxidx, o_.idx)
            assert can_alloc(o_), ("register deadlock", o_.txt, free)
            ok = [o_]
        rdy = [i for i in ok if eff(i) <= t]
        afterM = last_kind in ("mfma", "smf")
        msoon = any(isM[i.idx] and i.rt <= t + 24 for i in ok)
        vpen = t < valu_end + 8
        def key(i):
            mem = isDS[i.idx] or isVM[i.idx]
            if mem:
                if vpen: c = 3 if msoon else (0 if (urgent[i.idx] or i.idx in feed) else 1)
                elif isW[i.idx]: c = -1 if afterM or not msoon else 2
                elif urgent[i.idx]: c = -3
                elif i.idx in feed: c = -2
                else: c = -0.5
            elif i.kind == "salu" and msoon and t >= vec_free: c = 2.5
            elif urgent[i.idx]: c = 0
            else: c = 1
            return (c, i.prio, i.idx)
        def hz(i): return hazard_need(hist, st["pos"], conv(flat(i)[0], tentative(i)))
        pick = None
        if t < vec_free:
            ndone = 0
            for (o, dn) in lg:
                if dn + fslack <= t: ndone += 1
                else: break
            useful = any(o.kind == "dsr" for (o, dn) in lg[:ndone])
            nvd = 0
            for (o, dn) in vm:
                if dn + 100 <= t: nvd += 1
                else: break
            usefulv = any(o.kind != "vst" for (o, dn) in vm[:nvd])
            if useful or usefulv:
                emit_wait(len(lg) - ndone if useful else None, len(vm) - nvd if usefulv else None); st["fw"] = st.get("fw", 0) + 1
                continue
            sc = sorted([i for i in rdy if i.kind == "salu" or (i.kind == "bar" and wait_need(lg, vm, conv(i, {})) == (None, None))], key=key)
            sc = [i for i in sc if hz(i) == 0]
            if sc: pick = sc[0]
            else:
                st["t"] = vec_free; continue
        for i in sorted([i for i in rdy if isM[i.idx]], key=key) if pick is None else []:
            if hz(i) == 0: pick = i; break
        if pick is None:
            if mf_free > t and not (afterM and any(isDS[i.idx] or isVM[i.idx] for i in rdy)):
                nxt = sorted([i for i in ok if isM[i.idx] and i.rt <= mf_free], key=key)
                if nxt and nxt[0].rt <= t + 4:
                    nl, nv = wait_need(lg, vm, conv(nxt[0], tentative(nxt[0])))
                    if nl is not None or nv is not None:
                        emit_wait(nl, nv); continue
            for i in sorted([i for i in rdy if not isM[i.idx]], key=key):
                if hz(i) == 0: pick = i; break
        if pick is None:
            fut = [eff(i) for i in ok if eff(i) > t]
            nt = min(fut) if fut else None
            if rdy and not (nt is not None and nt - t <= 8):
                pick = min(rdy, key=lambda i: (hz(i), key(i)))
            else:
                st["idle"] += nt - t
                if trace is not None: trace.append((t, f"<<< idle {nt-t}", ""))
                st["t"] = nt; continue
        avail.remove(pick)
        tmp = tentative(pick)
        assert tmp is not None, ("out of registers", pick.txt, pick.tag)
        for v, b in tmp.items():
            phys[v] = b; free = [f for f in free if f[1] != b]
        st["minfree"] = min(st["minfree"], len(free))
        tissue = None; pick_arr = 0
        for x0 in flat(pick):
            x = conv(x0, {})
            if x.kind in ("dsr", "dsw") and len(lg) >= 15: emit_wait(13, None)
            nl, nv = wait_need(lg, vm, x)
            if nl is not None or nv is not None: emit_wait(nl, nv)
            hn = hazard_need(hist, st["pos"], x)
            if hn:
                lines.append(f"    s_nop {hn-1}")
                if trace is not None: trace.append((st["t"], f"nop {hn}", ""))
                st["pos"] += hn; st["t"] += 4 * hn; st["nop"] += hn
            if x.kind in ("mfma", "smf") and st["t"] < mf_free: st["t"] = mf_free
            if x.kind not in ("salu", "bar", "smem") and st["t"] < vec_free: st["t"] = vec_free
            if x.kind in ("dsr", "dsw", "vld", "vst", "dma") and st["t"] < valu_end + 8:
                st["vpen"] = st.get("vpen", 0) + valu_end + 8 - st["t"]; st["t"] = valu_end + 8
            if tissue is None: tissue = st["t"]
            lines.append("    " + x.txt + (f"    ; {x.tag}" if x.tag else ""))
            if trace is not None: trace.append((st["t"], x.txt + f"   [free {len(free)}]", x.tag))
            hist.append((x, st["pos"])); st["pos"] += 1
            if x.kind in ("dsr", "dsw"):
                occ = (16 if "b128" in x.txt else 8) * (2 if x.kind == "dsw" else 1)
                if dma_busy(st["t"]): occ = int(occ * dmaf)
                lds_free = max(lds_free, st["t"]) + occ
                ds_done = lds_free + ldslat
                lg.append((x, ds_done))
            if x.kind in ("vld", "vst", "dma"):
                arr = max(pick.arrive, st["t"] + (1800 if (" nt" in x.txt and st["t"] > 3000) else l2lat))
                arr = max([arr] + [a for _, a in vm[-1:]])
                vm.append((x, arr))
                big = "x4" in x.txt
                isw = x.tag.startswith("wload")
                vm_free = st["t"] + (st_gap if x.kind == "vst" else w_gap if isw else vm_gap if big else 32)
                if x.kind != "vst": vmq.append((arr, (w_wt if isw else 1.0) if big else 0.15))
                pick_arr = arr
            if x.kind in ("mfma", "smf"):
                mf_free = st["t"] + 16; vec_free = st["t"] + COST[x.kind]
            if x.kind == "bar": marks.append((st["t"], x.tag))
            if x.kind == "dsw":
                if st["t"] < dw_free: st["t"] = dw_free
                big = "b128" in x.txt
                kf = dmaw if dma_busy(st["t"]) else 1
                dw_free = st["t"] + int((52 if big else 28) * kf)
                st["t"] += int((24 if big else 14) * kf)
            elif x.kind in ("mfma", "smf", "bar"): st["t"] += 4
            else: st["t"] += COST[x.kind]
            if x.kind not in ("salu", "bar"): last_kind = x.kind
            if x.kind in VALU_KINDS: valu_end = st["t"]
        issued[pick.idx] = tissue
        unI.remove(pick.idx)
        if isM[pick.idx]: unM.remove(pick.idx)
        for v in vqs[pick.idx]:
            remaining[v] -= 1
            if remaining[v] == 0:
                fclock[0] += 1; free.append((fclock[0], phys[v]))
        for ll in late_left:
            if ll[1] is None: continue
            ll[0].discard(pick.idx)
            if not ll[0]:
                for b in ll[1]:
                    fclock[0] += 1; free.append((fclock[0], b))
                ll[1] = None
        peak_cache["v"] = None
        for (s_, l) in pick.succs:
            c = ins[s_]
            if l == sched.LAT_VM: c.rt = max(c.rt, pick_arr)
            elif l in (sched.LAT_DS, 60) and isDS[pick.idx]: c.rt = max(c.rt, ds_done)
            else: c.rt = max(c.rt, tissue + l)
            c.npred -= 1
            if c.npred == 0: avail.append(c)
    return lines, st, marks
```

```python
import sys, math, struct
from sched import *
from sched5 import schedule5
import sched

NAME = "standalone__window_attn_davit__vision"
def f32bits(x): return struct.unpack("<I", struct.pack("<f", x))[0]

ROW = 3744; PIX = 416
XT = 0
HB = 59904
H_OFF = [0, 24576]; BC_OFF = 18432; ST_OFF = 22528; O_OFF = 43008
RING = HB + 61440
NR = 3
OUTB = RING; OPX = 400
SM = RING + 36864
HX_OFF, OX_OFF, X0X_OFF = 0, 1536, 3072
LDS_TOTAL = SM + 4608
SRB = HB + 24576
LOC = {"R0": RING, "R1": RING + 12288, "R2": RING + 24576, "H": HB + 24576, "O": HB + 43008, "X0": XT + 9 * ROW, "X1": XT + 9 * ROW + 12288}
PATCH = HB + O_OFF
assert LDS_TOTAL <= 163840

def V(i, n=1): return R("v", i, n)
def A(i, n=1): return R("a", i, n)
def S(i, n=1): return R("s", i, n)

NPOOL = 136
p_ = [NPOOL]
def fix(n):
    r = V(p_[0], n); p_[0] += n; return r
convA = fix(36); WOV = fix(32); KX = fix(6); QX = fix(6); VB = fix(12); ONES = fix(6); IDENT = fix(2)
aCV = fix(6)
aCV1 = [aCV[k] for k in range(3)]; aCV2 = [aCV[3 + k] for k in range(3)]
aOW = [fix(1) for _ in range(3)]
aW128, aW64, aRD, aBCR, aSTW, aXW128, aXW64, voffX, aOR, voffO, SIDX = [fix(1) for _ in range(11)]
SPARE = p_[0]
assert SPARE <= 256, SPARE

class RA:
    def __init__(s): s.n = 0; s.octs = []
    def q(s):
        s.n += 1; return R("q", 4 * (s.n - 1), 4)
    def o(s):
        s.octs.append(s.n); s.n += 2; return R("q", 4 * (s.n - 2), 8)
    def p(s): return s.q()[0:2]
    def rel(s, *rs): pass

def wunit(sl, ks):
    base = (sl * 6 + ks) * 12
    return [A(base + 4 * ft, 4) if base + 4 * ft < 256 else WOV[base + 4 * ft - 256:base + 4 * ft - 252] for ft in range(3)]
SL_K, SL_V, SL_Q, SL_O = 0, 1, 2, 3
SL_COL = {SL_Q: 0, SL_K: 384, SL_V: 768}

srdX, srdDW, srdWQ, srdWO, srdOUT = S(16, 4), S(20, 4), S(24, 4), S(28, 4), S(32, 4)
sW, sXCD, sCOL, sROW, sM0, sTMP, sTMP2, sWOFF, sC, sINV, sEPS = [S(36 + i) for i in range(11)]
sM6 = S(48, 2)
sM1, sM2, sM3, sLO = S(52, 2), S(54, 2), S(56, 2), S(58, 2)
sMX = [S(60 + 2 * i, 2) for i in range(4)]
sSO = [S(68 + i) for i in range(4)]
sT3 = S(76, 2)
sA, sB, sD, sE = S(84), S(85), S(86), S(87)
sPC = S(88, 2)
sRS, sGS, sRW = S(90), S(91), S(92)

CFG = dict(xt0=1850, xdt=150, wdt=80, w0=-300, rf_at=24, hoist=3, xfirst=23, k0i=0, kb=1, ki=3, eo=2, bw=0.0, accres=0, slots="R0/R1/R2/H/R0/R1/O/R2/H/R0/R1/X0/X1/R2/R0/R1/X0/X1/R2/R0/R1/X0/X1/R2", stflags="sc1", codepf=1, kahead=10, fslack=10, window=250)

def gen(stamps=False):
    P = Prog(); ra = RA()
    P.track_scc = True
    tid, lane, t_, g_ = V(0), V(1), V(2), V(3)
    tmp1, tmp2, tmp3, tmp4 = V(4), V(5), V(6), V(7)
    pixr, chr_, hi, vp = V(8), V(9), V(10), V(11)
    dA, dB, dC, cpd = V(12), V(13), V(14), V(15)
    tch, tch2, td1, td2 = V(16), V(17), V(18), V(19)
    H = P
    P.tag = "head"
    if stamps:
        H.raw("s_memtime s[78:79]", "smem", wr=["s78", "s79"]); H.raw("s_memrealtime s[80:81]", "smem", wr=["s80", "s81"])
    for k, o in ((16, 0), (20, 8), (24, 16), (28, 24), (32, 32)):
        H.raw(f"s_load_dwordx2 s[{k}:{k+1}], s[0:1], {o}", "smem", wr=[f"s{k}", f"s{k+1}"])
    if stamps: H.raw("s_load_dwordx2 s[72:73], s[0:1], 48", "smem", wr=["s72", "s73"])
    H.raw("s_cmp_ge_u32 s2, 256")
    H.raw("s_cbranch_scc1 L_end")
    clk = [CFG["xt0"]]
    H.s("s_lshr_b32", sCOL, S(2), 3, scc=True)
    if CFG["codepf"]:
        H.raw("s_getpc_b64 s[88:89]", wr=["s88", "s89"])
        H.v("v_lshrrev_b32", tmp1, 4, tid)
        H.v("v_lshlrev_b32", tmp1, 7, tmp1)
        H.v("v_lshl_add_u32", tmp1, sCOL, 11, tmp1)
        H.v("v_min_u32", tmp1, "CODE_REMAIN", tmp1)
        i = P.add(Ins(f"global_load_dword {cpd}, {tmp1}, s[88:89]", "vld", tmp1.regs() + ["s88", "s89"], cpd.regs(),
                      res_rd=("VM",), res_wr=("VM",)))
        i.arrive = clk[0]
    H.v("v_lshrrev_b32", tmp2, 6, tid)
    H.v("v_and_b32", lane, 63, tid)
    H.v("v_readfirstlane_b32", sW, tmp2)
    H.s("s_and_b32", sXCD, S(2), 7, scc=True)
    H.s("s_mov_b32", srdX[2], 19267584); H.s("s_mov_b32", srdX[3], "0x20000")
    H.s("s_mul_i32", sTMP, sW, 60)
    H.s("s_min_u32", sTMP, sTMP, 170, scc=True)
    H.s("s_mul_i32", sTMP2, sCOL, 7)
    H.s("s_sub_u32", sTMP2, sTMP2, 1, scc=True)
    H.v("v_add_u32", tmp3, sTMP, lane)
    H.v("v_mul_u32_u24", pixr, 2521, tmp3)
    H.v("v_lshrrev_b32", pixr, 16, pixr)
    H.v("v_mul_u32_u24", chr_, 26, pixr)
    H.v("v_sub_u32", chr_, tmp3, chr_)
    H.v("v_add_u32", tmp2, sTMP2, pixr)
    H.v("v_cmp_gt_u32", sT3, 24, chr_)
    H.v("v_cmp_gt_u32", "vcc", 224, tmp2)
    H.v("v_mul_u32_u24", tmp2, 384, tmp2)
    H.v("v_lshl_add_u32", tmp2, chr_, 4, tmp2)
    H.s("s_and_b64", "vcc", "vcc", sT3, scc=True)
    H.v("v_bfrev_b32", tmp4, 2)
    H.s("s_lshl_b32", sM0, sTMP, 4, scc=True)
    H.v("v_cndmask_b32", voffX, tmp4, tmp2, "vcc")
    H.s("s_mul_i32", sROW, sXCD, 28 * 86016)
    H.s("s_mov_b32", sGS, 86016)
    H.s("s_movk_i32", sRS, ROW)
    H.s("s_sub_u32", sSO[0], sROW, sGS, scc=True)
    H.s("s_cselect_b32", sSO[0], "0x40000000", sSO[0], rdscc=True)
    H.s("s_mov_b32", "m0", sM0)
    H.s("s_mov_b32", sSO[1], sROW)
    H.raw("s_waitcnt lgkmcnt(0)")
    P.track_scc = False
    def arr(dt):
        clk[0] += dt; P.ins[-1].arrive = clk[0]
    for r in range(9):
        P.tag = f"dma r{r}"
        if r:
            P.s("s_add_u32", "m0", "m0", sRS)
            if r > 1: P.s("s_add_u32", sSO[1], sSO[1], sGS)
            else: P.raw("s_nop 0")
        P.dma(voffX, srdX, sSO[1] if r else sSO[0], [("XT", r)], "nt"); arr(CFG["xdt"])
    tA, tB, tC = tch, tch2, td1
    P.tag = "dw"
    P.v("v_and_b32", t_, 15, lane)
    P.v("v_lshrrev_b32", g_, 4, lane)
    P.v("v_lshrrev_b32", hi, 5, lane)
    P.s("s_mov_b32", srdDW[2], 3456); P.s("s_mov_b32", srdDW[3], "0x20000")
    P.s("s_mul_i32", sWOFF, sW, 96)
    P.v("v_and_b32", tA, 14, lane)
    P.v("v_lshlrev_b32", tA, 1, tA)
    P.v("v_mov_b32", dA, tA)
    P.v("v_add_u32", tB, g_, hi)
    P.v("v_mul_u32_u24", tB, 384, tB)
    P.v("v_add_u32", dB, tA, tB)
    P.v("v_lshlrev_b32", tB, 2, g_)
    P.v("v_mov_b32", tC, "0x8276")
    P.v("v_bfe_u32", tB, tC, tB, 4)
    P.v("v_mul_u32_u24", tB, 384, tB)
    P.v("v_add_u32", dC, tA, tB)
    def cA(ct, p): return convA[(ct * 3 + p) * 4:(ct * 3 + p) * 4 + 4]
    for ct in range(3):
        for p in range(3):
            P.vld("buffer_load_dword", cA(ct, p)[3], (dA, dB, dC)[p], srdDW, sWOFF, (5 * 384 if p == 0 else 0) + 32 * ct); arr(0)
    P.tag = "touch"
    P.s("s_mov_b32", srdWQ[2], 221184); P.s("s_mov_b32", srdWQ[3], "0x20000")
    P.s("s_mov_b32", srdWO[2], 73728); P.s("s_mov_b32", srdWO[3], "0x20000")
    P.s("s_lshl_b32", sA, sCOL, 2)
    P.s("s_add_u32", sA, sA, sW)
    P.v("v_lshlrev_b32", tch, 7, t_)
    P.v("v_and_b32", tch2, "0x380", tch)
    P.s("s_lshl_b32", sB, sA, 11)
    P.s("s_lshl_b32", sD, sA, 10)
    P.vld("buffer_load_dword", td1, tch, srdWQ, sB); arr(0)
    P.vld("buffer_load_dword", td2, tch2, srdWO, sD); arr(0)
    nfixed = len(P.ins)
    P.tag = "dma patch"
    P.v("v_mul_u32_u24", tmp1, 86, pixr)
    P.v("v_lshrrev_b32", tmp1, 8, tmp1)
    P.v("v_mul_u32_u24", tmp2, 3, tmp1)
    P.v("v_sub_u32", tmp2, pixr, tmp2)
    P.v("v_add_u32", tmp2, sTMP2, tmp2)
    P.v("v_cmp_le_i32", "vcc", 0, tmp2)
    P.v("v_mul_u32_u24", tmp1, 7 * 86016, tmp1)
    P.v("v_mul_u32_u24", tmp2, 384, tmp2)
    P.s("s_and_b64", "vcc", "vcc", sT3)
    P.v("v_lshl_add_u32", tmp2, chr_, 4, tmp2)
    P.v("v_add_u32", tmp2, tmp2, tmp1)
    P.v("v_cndmask_b32", vp, tmp4, tmp2, "vcc")
    for r in range(3):
        if r == 0:
            P.s("s_add_u32", "m0", sM0, PATCH); P.s("s_add_u32", sSO[1], sROW, 12 * 86016)
        else:
            P.s("s_add_u32", "m0", "m0", sRS); P.s("s_add_u32", sSO[1], sSO[1], sGS)
        P.dma(vp, srdX, sSO[1], [("PATCH",)], "nt"); arr(CFG["xdt"])

    so_i = [1]
    def nso():
        so_i[0] = (so_i[0] + 1) % 4
        return sSO[so_i[0]]
    def xrow(r, slot, dt=None):
        P.tag = f"dma r{r}"
        so = nso()
        P.s("s_add_u32", "m0", sM0, XT + slot * ROW)
        P.s("s_add_u32", so, sROW, (r - 1) * 86016)
        P.dma(voffX, srdX, so, [("XT", slot)], "nt"); arr(CFG["xdt"] if dt is None else dt)
    P.tag = "addr"
    wo4 = ra.q(); wo4b = ra.q(); sr2 = ra.q(); aSR, aSRb, aXRD = sr2[0], sr2[1], sr2[2]; cxq = ra.q(); aCX1, aCX2 = cxq[0], cxq[1]
    for j in range(3):
        P.v("v_add_u32", tmp2, 64 * j, lane)
        P.v("v_mul_u32_u24", tmp3, 43691, tmp2)
        P.v("v_lshrrev_b32", tmp3, 18, tmp3)
        P.v("v_mul_u32_u24", tmp4, 6, tmp3)
        P.v("v_sub_u32", tmp2, tmp2, tmp4)
        P.v("v_lshlrev_b32", tmp2, 4, tmp2)
        if j: P.v("v_subrev_u32", tmp2, 1024 * j, tmp2)
        if j == 1: P.v("v_cmp_lt_u32", "vcc", 15, tmp3)
        for w4, stride in ((wo4, 1152), (wo4b, 384)):
            P.v("v_mul_u32_u24", tmp4, stride, tmp3)
            P.v("v_add_u32", w4[j], tmp2, tmp4)
            if j == 1:
                P.v("v_add_u32", tmp4, 32 * stride, w4[1])
                P.v("v_cndmask_b32", w4[3], w4[1], tmp4, "vcc")
    P.s("s_mul_i32", sRW, sW, 3072)
    P.v("v_lshrrev_b32", tmp2, 2, lane)
    P.v("v_mul_u32_u24", tmp2, 96, tmp2)
    P.v("v_and_b32", tmp3, 3, lane)
    P.v("v_lshl_add_u32", tmp2, tmp3, 3, tmp2)
    P.v("v_add_u32", aSR, sRW, tmp2)
    P.v("v_add_u32", aSRb, SRB, aSR)
    def wdma(sl, ks, slot):
        P.tag = f"wload{sl}.{ks}"
        stride = 384 if sl == SL_O else 1152
        srd = srdWO if sl == SL_O else srdWQ
        col = 0 if sl == SL_O else SL_COL[sl]
        w4 = wo4b if sl == SL_O else wo4
        row0 = 48 * ks if ks < 4 else 96 * (ks - 4) + 32
        P.s("s_add_u32", "m0", sRW, LOC[slot])
        so = nso(); P.s("s_add_u32", so, sWOFF, col + row0 * stride)
        for j in range(3):
            if ks >= 4 and j == 2:
                so = nso(); P.s("s_add_u32", so, sWOFF, col + (row0 + 32) * stride)
            vo = w4[3] if (ks >= 4 and j == 1) else w4[j]
            P.dma(vo, srd, so, [("RG", slot)], "", off=1024 * j); arr(CFG["wdt"])
        return slot
    def wtr(sl, ks, slot):
        P.tag = f"wtr{sl}.{ks}"
        u = wunit(sl, ks)
        for ft in range(3):
            for hb in range(2):
                P.dsr("ds_read_b64_tr_b16", u[ft][2 * hb:2 * hb + 2], aSR if slot[0] == "X" else aSRb,
                      LOC[slot] - (0 if slot[0] == "X" else SRB) + hb * 1536 + 32 * ft, res=[("RG", slot)])
    for r in range(9, 16): xrow(r, r)
    clk[0] += CFG["w0"]
    units = [(sl, ks) for sl in (SL_K, SL_Q, SL_V, SL_O) for ks in range(6)]
    SLOTS = CFG["slots"].split("/")
    assert len(SLOTS) == 24
    wstate = dict(d=0, t=0)
    def wstep(upto_dma, upto_tr=0):
        while wstate["d"] < upto_dma:
            n_ = wstate["d"]
            prev = [k for k in range(n_) if SLOTS[k] == SLOTS[n_]]
            if prev:
                while wstate["t"] <= prev[-1]:
                    wtr(*units[wstate["t"]], SLOTS[wstate["t"]]); wstate["t"] += 1
            wdma(*units[n_], SLOTS[n_]); wstate["d"] += 1
        while wstate["t"] < upto_tr:
            wtr(*units[wstate["t"]], SLOTS[wstate["t"]]); wstate["t"] += 1
    firstO = SLOTS.index("O"); firstX = min(SLOTS.index("X0"), SLOTS.index("X1"))
    lastHO = max(k for k in range(24) if SLOTS[k] in ("H", "O"))
    wstep(firstO)
    P.tag = "addr"
    for m, val in ((sM1, 0x22222222), (sM2, 0x44444444), (sM3, 0x88888888)):
        P.s("s_mov_b32", m[0], hex(val)); P.s("s_mov_b32", m[1], hex(val))
    P.s("s_mov_b32", sLO[0], -1); P.s("s_mov_b32", sLO[1], 0)
    for k in range(4): P.v("v_mov_b32", ONES[k], "0x3f803f80")
    mk = ra.q(); ms = ra.q(); e1 = ra.q(); e2 = ra.q()
    hm, u_, oc, sl_ = e1[0], e1[1], e1[2], e1[3]
    cvb, stb, h1, h2 = e2[0], e2[1], e2[2], e2[3]
    P.v("v_and_b32", tmp1, 1, t_)
    P.v("v_lshlrev_b32", tmp1, 4, tmp1)
    P.v("v_mov_b32", hm, "0xffff")
    P.v("v_lshlrev_b32", hm, tmp1, hm)
    P.v("v_and_b32", tmp1, 1, g_)
    P.v("v_lshlrev_b32", tmp4, 2, tmp1)
    P.v("v_lshrrev_b32", tmp2, 1, t_)
    P.v("v_sub_u32", tmp2, tmp2, tmp4)
    P.v("v_lshrrev_b32", tmp3, 2, t_)
    for j in range(4):
        P.v("v_cmp_eq_u32", "vcc", j, tmp2)
        P.v("v_cmp_eq_u32", sT3, j, tmp3)
        P.v("v_cndmask_b32", mk[j], 0, hm, "vcc")
        P.v("v_cndmask_b32", ms[j], 0, hm, sT3)
    P.v("v_lshl_add_u32", cvb, tmp1, 4, sWOFF)
    P.v("v_and_b32", tmp1, 3, lane)
    P.v("v_mul_u32_u24", SIDX, "0x5555", tmp1)
    P.v("v_add_u32", u_, 4, t_)
    P.v("v_bfe_u32", oc, u_, 3, 1)
    P.v("v_and_b32", sl_, 7, u_)
    P.s("s_add_u32", sTMP, sWOFF, OUTB)
    P.v("v_lshl_add_u32", stb, g_, 3, sTMP)
    P.v("v_mul_u32_u24", h1, PIX, hi)
    P.v("v_mul_u32_u24", h2, 2 * ROW, hi)
    P.v("v_cmp_eq_u32", sT3, 7, sl_)
    P.v("v_add_u32", tmp2, 1, oc)
    P.v("v_cndmask_b32", tmp2, sl_, tmp2, sT3)
    P.v("v_cndmask_b32", tmp1, oc, 6, sT3)
    P.v("v_mul_u32_u24", tmp3, ROW, tmp1)
    P.v("v_mul_u32_u24", tmp4, PIX, tmp2)
    P.v("v_add3_u32", tmp3, tmp3, tmp4, cvb)
    P.v("v_add_u32", aCV1[0], tmp3, h1)
    P.v("v_add_u32", aCV2[0], tmp3, h2)
    P.v("v_mul_u32_u24", tmp3, 7 * OPX, tmp1)
    P.v("v_mul_u32_u24", tmp4, OPX, tmp2)
    P.v("v_add3_u32", aOW[0], tmp3, tmp4, stb)
    P.v("v_mov_b32", tmp3, 2 * ROW); P.v("v_mov_b32", tmp4, 2 * PIX)
    P.v("v_cndmask_b32", tmp3, tmp3, tmp4, sT3)
    for j in (1, 2):
        P.v("v_add_u32", aCV1[j], aCV1[j - 1], tmp3); P.v("v_add_u32", aCV2[j], aCV2[j - 1], tmp3)
    P.v("v_mov_b32", tmp3, 14 * OPX); P.v("v_mov_b32", tmp4, 2 * OPX)
    P.v("v_cndmask_b32", tmp3, tmp3, tmp4, sT3)
    for j in (1, 2): P.v("v_add_u32", aOW[j], aOW[j - 1], tmp3)
    P.tag = "convA"
    for ct in range(3):
        for p in range(3):
            f = cA(ct, p)
            if p == 0: P.v("v_cndmask_b32", f[3], f[3], ONES[0], sLO)
            for j in range(4): P.v("v_and_b32", f[j], f[3], (mk if p == 0 else ms)[j])

    def late_setup():
        P.tag = "addr"
        P.v("v_lshlrev_b32", tmp1, 4, lane)
        P.v("v_add_u32", aRD, HB, tmp1)
        P.s("s_lshl_b32", sTMP, sW, 10)
        P.v("v_add_u32", aW128, sTMP, aRD)
        P.s("s_add_u32", sT3[1], sTMP, HB + BC_OFF)
        P.v("v_lshl_add_u32", aBCR, t_, 4, sT3[1])
        P.s("s_lshr_b32", sTMP, sW, 1)
        P.s("s_and_b32", sTMP2, sW, 1)
        P.s("s_lshl_b32", sTMP2, sTMP2, 3)
        P.s("s_lshl_b32", sT3[0], sTMP, 10)
        P.s("s_add_u32", sT3[0], sT3[0], sTMP2)
        P.s("s_add_u32", sA, sT3[0], HB + ST_OFF)
        P.v("v_lshl_add_u32", tmp2, t_, 4, sA)
        P.v("v_lshrrev_b32", tmp3, 2, t_)
        P.v("v_cmp_eq_u32", "vcc", tmp3, g_)
        P.v("v_add_u32", tmp3, 8, aBCR)
        P.v("v_cndmask_b32", aSTW, tmp3, tmp2, "vcc")
        P.s("s_add_u32", sT3[0], sT3[0], 4096)
        P.v("v_add_u32", aW64, sT3[0], aRD)
        P.s("s_mov_b32", sINV, hex(f32bits(1.0 / 192)))
        P.s("s_mov_b32", sEPS, hex(f32bits(1e-5)))
        P.v("v_and_b32", tmp1, 3, lane)
        P.v("v_mul_u32_u24", tmp3, 3 * PIX, tmp1)
        P.v("v_add_u32", tmp3, PATCH - 3 * PIX, tmp3)
        P.v("v_mov_b32", tmp4, XT + 6 * ROW)
        P.v("v_cmp_eq_u32", "vcc", 0, tmp1)
        P.v("v_cndmask_b32", tmp3, tmp3, tmp4, "vcc")
        P.v("v_add3_u32", aCX1, tmp3, cvb, h1)
        P.v("v_add3_u32", aCX2, tmp3, cvb, h2)
        P.v("v_lshl_add_u32", tmp2, g_, 2, tmp1)
        P.v("v_lshlrev_b32", tmp2, 4, tmp2)
        P.v("v_add_u32", aXRD, SM, tmp2)
        P.s("s_lshl_b32", sT3[0], sW, 8)
        P.v("v_add_u32", aXW128, sT3[0], aXRD)
        P.s("s_add_u32", sTMP, sTMP, 4)
        P.s("s_lshl_b32", sT3[0], sTMP, 8)
        P.s("s_add_u32", sT3[0], sT3[0], sTMP2)
        P.v("v_add_u32", aXW64, sT3[0], aXRD)
    def late_setup2():
        P.tag = "addr"
        P.s("s_mov_b32", srdOUT[2], 19267584); P.s("s_mov_b32", srdOUT[3], "0x20000")
        P.s("s_mov_b32", sC, hex(f32bits(48 ** -0.5 * math.log2(math.e))))
        for k in range(4):
            P.s("s_mov_b32", sMX[k][0], hex(0x11111111 << k)); P.s("s_mov_b32", sMX[k][1], hex(0x11111111 << k))
        P.v("v_cmp_gt_u32", "vcc", 16, lane)
        P.v("v_cndmask_b32", ONES[4], 0, ONES[0], "vcc")
        P.v("v_mov_b32", ONES[5], ONES[4])
        P.v("v_lshlrev_b32", tmp1, 1, g_)
        P.v("v_lshrrev_b32", tmp2, 1, t_)
        P.v("v_sub_u32", tmp2, tmp2, tmp1)
        P.v("v_and_b32", tmp3, hm, ONES[0])
        for j in range(2):
            P.v("v_cmp_eq_u32", "vcc", j, tmp2)
            P.v("v_cndmask_b32", IDENT[j], 0, tmp3, "vcc")
        P.s("s_mul_i32", sTMP, sW, 40)
        P.v("v_add_u32", tmp1, sTMP, lane)
        P.v("v_min_u32", tmp2, 167, tmp1)
        P.v("v_mul_u32_u24", tmp3, 2731, tmp2)
        P.v("v_lshrrev_b32", tmp3, 16, tmp3)
        P.v("v_add_u32", tmp3, tmp3, tmp2)
        P.v("v_lshlrev_b32", tmp3, 4, tmp3)
        P.v("v_add_u32", aOR, OUTB, tmp3)
        P.s("s_mul_i32", sTMP2, sCOL, 7 * 384)
        P.v("v_lshl_add_u32", tmp2, tmp1, 4, sTMP2)
        P.s("s_add_u32", sTMP, sW, 1)
        P.s("s_and_b32", sTMP, sTMP, 4)
        P.s("s_lshl_b32", sTMP, sTMP, 1)
        P.s("s_add_u32", sTMP, sTMP, 40)
        P.v("v_bfrev_b32", tmp4, 2)
        P.v("v_cmp_gt_u32", "vcc", sTMP, lane)
        P.v("v_cndmask_b32", voffO, tmp4, tmp2, "vcc")
        P.v("v_cmp_lt_u32", sM6, 23, tmp1)

    PAIR_OFF = [0, ROW, ROW + PIX, 2 * ROW, 2 * PIX]

    def pack3(acc, pd=None):
        a, b, c = acc
        P.v("v_cvt_pk_bf16_f32", a[0], a[0], a[1]); P.v("v_cvt_pk_bf16_f32", a[1], a[2], a[3])
        P.v("v_cvt_pk_bf16_f32", a[2], b[0], b[1]); P.v("v_cvt_pk_bf16_f32", a[3], b[2], b[3])
        if pd is None: pd = c[0:2]
        P.v("v_cvt_pk_bf16_f32", pd[0], c[0], c[1]); P.v("v_cvt_pk_bf16_f32", pd[1], c[2], c[3])
        return a, pd

    def conv_tile(win, tt, stat_tile, xp=None):
        P.tag = f"conv{win}.{tt}"
        acc = [ra.q() for _ in range(3)]
        if win == "X":
            a1, a2, base = aCX1, aCX2, 0
            res = [("XT", r) for r in (6, 7, 8)] + [("PATCH",)]
        else:
            a1, a2, base = aCV1[tt], aCV2[tt], (win & 1) * 7 * ROW
            r0 = (win & 1) * 7
            res = [("XT", r0 + r) for r in sorted(set(list(range(2 * tt, 2 * tt + 4)) + [6, 7, 8]))]
        for ct in range(3):
            f = ra.q()
            P.dsr("ds_read_b128", f, a1, base + PAIR_OFF[2] + 32 * ct, res=res)
            P.mfma32(acc[ct], cA(ct, 0), f, 0)
        for sp, (pa, pb) in enumerate(((0, 1), (3, 4))):
            for ct in range(3):
                f = ra.o()
                P.dsr("ds_read_b128", f[0:4], a1, base + PAIR_OFF[pa] + 32 * ct, res=res)
                P.dsr("ds_read_b128", f[4:8], a2 if pb == 4 else a1, base + PAIR_OFF[pb] + 32 * ct, res=res)
                P.smf(acc[ct], cA(ct, 1 + sp), f, SIDX)
        P.tag = f"stat{win}.{tt}"
        xq = ra.q()
        if xp is None: xp = ra.p()
        for k in range(4): P.v("v_cvt_pk_bf16_f32", xq[k], acc[k >> 1][2 * (k & 1)], acc[k >> 1][2 * (k & 1) + 1])
        for k in range(2): P.v("v_cvt_pk_bf16_f32", xp[k], acc[2][2 * k], acc[2][2 * k + 1])
        if win == "X":
            P.dsw("ds_write_b128", aXW128, xq, X0X_OFF, res=[("X0X",)])
            P.dsw("ds_write_b64", aXW64, xp, X0X_OFF, res=[("X0X",)])
        sm, gr = ra.q(), ra.q()
        P.mfma32(gr, xq, xq, 0)
        P.mfma32(sm, ONES[0:4], xq, 0)
        P.mfma16(gr, xp, xp, gr)
        P.mfma16(sm, ONES[0:2], xp, sm)
        ra.rel(xq, xp)
        P.v("v_cndmask_b32", gr[0], gr[0], gr[1], sM1)
        P.v("v_cndmask_b32", gr[0], gr[0], gr[2], sM2)
        P.v("v_cndmask_b32", sm[1], gr[0], gr[3], sM3)
        P.dsw("ds_write_b64", aSTW, sm[0:2], 256 * stat_tile, res=[("ST", stat_tile)])
        return acc, (xq, xp)

    def norm_head(win, ntiles):
        P.tag = f"fin{win}"
        a, b = ra.q(), ra.q()
        sres = [("ST", k) for k in range(ntiles)]
        P.dsr("ds_read_b128", a, aRD, ST_OFF, res=sres)
        P.dsr("ds_read_b128", b, aRD, ST_OFF + 1024, res=sres)
        P.v("v_add_f32", a[0], a[0], a[2]); P.v("v_add_f32", a[1], a[1], a[3])
        P.v("v_add_f32", b[0], b[0], b[2]); P.v("v_add_f32", b[1], b[1], b[3])
        P.v("v_add_f32", a[0], a[0], b[0]); P.v("v_add_f32", a[1], a[1], b[1])
        P.v("v_mul_f32", a[2], sINV, a[0])
        P.v("v_mul_f32", a[1], sINV, a[1])
        P.v("v_fma_f32", a[1], ("-%s", a[2]), a[2], a[1])
        P.v("v_max_f32", a[1], 0, a[1])
        P.v("v_add_f32", a[1], sEPS, a[1])
        P.v("v_rsq_f32", a[0], a[1])
        P.v("v_mul_f32", a[1], ("-%s", a[2]), a[0])
        P.dsw("ds_write_b64", aW128, a[0:2], BC_OFF, res=[("BC",)])
        prs = [b[0:2], b[2:4], a[2:4], a[0:2]]
        for k in range(ntiles): P.dsr("ds_read_b64", prs[k], aBCR, 256 * k, res=[("BC",)])
        if ntiles < 4: ra.rel(prs[3])
        return prs
    def norm_tile(kind, tt, acc, pr):
        P.tag = f"norm{kind}.{tt}"
        for q in range(12): P.v("v_fma_f32", acc[q >> 2][q & 3], acc[q >> 2][q & 3], pr[0], pr[1])
        ra.rel(pr)
        hq, hp = pack3(acc)
        if kind == "X":
            P.dsw("ds_write_b128", aXW128, hq, HX_OFF, res=[("HX",)])
            P.dsw("ds_write_b64", aXW64, hp, HX_OFF, res=[("HX",)])
        else:
            o = H_OFF[kind & 1] + tt * 6144
            P.dsw("ds_write_b128", aW128, hq, o, res=[("H", kind & 1)])
            P.dsw("ds_write_b64", aW64, hp, o, res=[("H", kind & 1)])
        ra.rel(hq, hp)

    def hfrag(f, win, tt, ks):
        if tt == "X": P.dsr("ds_read_b128", f, aXRD, HX_OFF + 256 * ks, res=[("HX",)])
        else: P.dsr("ds_read_b128", f, aRD, H_OFF[win & 1] + tt * 6144 + 1024 * ks, res=[("H", win & 1)])

    def gemm(win, tt, parts, fr, VA, pd=None):
        P.tag = f"{parts}{win}.{tt}"
        accs = {p: [ra.q() for _ in range(3)] for p in parts}
        for ks in range(6):
            f = ra.q(); hfrag(f, win, tt, ks)
            for p in parts:
                w = wunit({"K": SL_K, "V": SL_V, "Q": SL_Q}[p], ks)
                for dt in range(3):
                    d = accs[p][dt]
                    if p == "V": P.mfma32(d, f, w[dt], d if ks else 0)
                    else: P.mfma32(d, w[dt], f, d if ks else 0)
        out = {}
        for p in parts:
            if p == "V":
                for dt in range(3):
                    d = accs[p][dt]
                    if tt == 0:
                        VA.append(d); dst = d[0:2]
                    elif tt == 1: dst = VA[dt][2:4]
                    elif tt == 2: dst = VB[4 * dt:4 * dt + 2]
                    else: dst = VB[4 * dt + 2:4 * dt + 4]
                    P.v("v_cvt_pk_bf16_f32", dst[0], d[0], d[1]); P.v("v_cvt_pk_bf16_f32", dst[1], d[2], d[3])
                    if tt != 0: ra.rel(d)
            elif tt == "X":
                dst = KX if p == "K" else QX
                for dt in range(3):
                    d = accs[p][dt]
                    P.v("v_cvt_pk_bf16_f32", dst[2 * dt], d[0], d[1]); P.v("v_cvt_pk_bf16_f32", dst[2 * dt + 1], d[2], d[3])
                    ra.rel(d)
                out[p] = (dst[0:4], dst[4:6])
            else:
                out[p] = pack3(accs[p], pd); out['hi'] = accs[p][2][2:4]
        return out

    def scores(win, qt, Ks, qp):
        P.tag = f"S{win}.{qt}"
        s = [ra.q() for _ in range(4)]
        for kt in range(4): P.mfma32(s[kt], Ks[kt][0], qp[0], 0)
        for kt in range(4): P.mfma16(s[kt], Ks[kt][1], qp[1], s[kt])
        if qt != "X": ra.rel(*qp)
        return s
    def softmax(win, qt, s):
        P.tag = f"sm{win}.{qt}"
        sx = s[3][win]
        fre = [s[3][k] for k in range(4) if k != win]
        m, t2 = fre[0], fre[1]
        vals = [s[k >> 2][k & 3] for k in range(12)] + [sx]
        P.v("v_max3_f32", m, vals[0], vals[1], vals[12])
        P.v("v_max3_f32", t2, vals[2], vals[3], vals[4])
        P.v("v_max3_f32", m, m, vals[5], vals[6])
        P.v("v_max3_f32", t2, t2, vals[7], vals[8])
        P.v("v_max3_f32", m, m, vals[9], vals[10])
        P.v("v_max3_f32", m, m, t2, vals[11])
        P.v("v_mov_b32", t2, m)
        P.swap("v_permlane32_swap_b32", m, t2)
        P.v("v_max_f32", m, m, t2)
        P.v("v_mov_b32", t2, m)
        P.swap("v_permlane16_swap_b32", m, t2)
        P.v("v_max_f32", m, m, t2)
        P.v("v_mul_f32", m, sC, m)
        for x in vals:
            P.v("v_fma_f32", x, x, sC, ("-%s", m))
        for x in vals: P.v("v_exp_f32", x, x)
        a, b, c = s[0], s[1], s[2]
        P.v("v_cvt_pk_bf16_f32", a[0], a[0], a[1]); P.v("v_cvt_pk_bf16_f32", a[1], a[2], a[3])
        P.v("v_cvt_pk_bf16_f32", a[2], b[0], b[1]); P.v("v_cvt_pk_bf16_f32", a[3], b[2], b[3])
        P.v("v_cvt_pk_bf16_f32", c[0], c[0], c[1]); P.v("v_cvt_pk_bf16_f32", c[1], c[2], c[3])
        if win & 1: P.v("v_cvt_pk_bf16_f32", c[2 + (win >> 1)], 0, sx)
        else: P.v("v_cvt_pk_bf16_f32", c[2 + (win >> 1)], sx, 0)
        P.v("v_mov_b32", c[3 - (win >> 1)], 0)
        ra.rel(b, s[3])
        return a, c
    def pv(win, qt, pp, VA):
        P.tag = f"PV{win}.{qt}"
        pa, pb = pp
        oa = [ra.q() for _ in range(3)]; ls = ra.q()
        P.mfma32(ls, ONES[0:4], pa, 0)
        for dt in range(3): P.mfma32(oa[dt], VA[dt], pa, 0)
        P.mfma32(ls, ONES[2:6], pb, ls)
        for dt in range(3): P.mfma32(oa[dt], VB[4 * dt:4 * dt + 4], pb, oa[dt])
        ra.rel(pa, pb)
        return oa, ls
    def onorm(win, qt, ol):
        P.tag = f"on{win}.{qt}"
        oa, ls = ol
        P.v("v_rcp_f32", ls[0], ls[0])
        for q in range(12): P.v("v_mul_f32", oa[q >> 2][q & 3], oa[q >> 2][q & 3], ls[0])
        ra.rel(ls)
        oq, op = pack3(oa)
        if qt == "X":
            P.begin_bundle()
            P.s("s_mov_b64", "exec", sMX[win])
            P.dsw("ds_write_b128", aXW128, oq, OX_OFF, res=[("OX",)])
            P.dsw("ds_write_b64", aXW64, op, OX_OFF, res=[("OX",)])
            P.s("s_mov_b64", "exec", -1)
            P.end_bundle()
        else:
            o = O_OFF + qt * 6144
            P.dsw("ds_write_b128", aW128, oq, o, res=[("O", qt)])
            P.dsw("ds_write_b64", aW64, op, o, res=[("O", qt)])
        ra.rel(oq, op)

    def proj_init(win, tt, x0):
        P.tag = f"proj{win}.{tt}"
        if tt == "X":
            xq, xp = ra.q(), ra.p()
            P.dsr("ds_read_b128", xq, aXW128, X0X_OFF, res=[("X0X",)])
            P.dsr("ds_read_b64", xp, aXW64, X0X_OFF, res=[("X0X",)])
        else: xq, xp = x0
        acc = [ra.q() for _ in range(3)]
        for ct, x in enumerate((xq[0:2], xq[2:4], xp)): P.mfma16(acc[ct], IDENT, x, 0)
        return acc
    def proj_tile(win, tt, acc, axrd=None, astx=None):
        P.tag = f"proj{win}.{tt}"
        for ks in range(6):
            f = ra.q()
            if tt == "X": P.dsr("ds_read_b128", f, axrd, OX_OFF + 256 * ks, res=[("OX",)])
            else: P.dsr("ds_read_b128", f, aRD, O_OFF + tt * 6144 + 1024 * ks, res=[("O", tt)])
            w = wunit(SL_O, ks)
            for ct in range(3): P.mfma32(acc[ct], w[ct], f, acc[ct])
        for ct in range(3):
            d = acc[ct]
            P.v("v_cvt_pk_bf16_f32", d[0], d[0], d[1]); P.v("v_cvt_pk_bf16_f32", d[1], d[2], d[3])
            if tt == "X": P.vst("buffer_store_dwordx2", d[0:2], astx, srdOUT, sROW, 32 * ct, CFG["stflags"])
            else: P.dsw("ds_write_b64", aOW[tt], d[0:2], 32 * ct, res=[("OUT", tt)])
    def out_rows(win, rows):
        for r in rows:
            P.tag = f"out{win}.{r >> 1}"
            f = ra.q()
            P.dsr("ds_read_b128", f, aOR, r * 7 * OPX, res=[("OUT", r >> 1)] if r < 6 else [("OUT", k) for k in range(3)])
            so = nso(); P.s("s_add_u32", so, sROW, (win * 7 + r) * 86016)
            if r == 6:
                P.begin_bundle(); P.s("s_mov_b64", "exec", sM6)
            P.vst("buffer_store_dwordx4", f, voffO, srdOUT, so, 0, CFG["stflags"])
            if r == 6:
                P.s("s_mov_b64", "exec", -1); P.end_bundle()

    def bar(tag, res):
        P.tag = tag; P.bar(res)
    XTr = lambda a, b: [("XT", r) for r in range(a, b)]
    RGr = [("RG", k) for k in LOC]
    fr = None

    def conv3(win):
        pq = ra.q()
        return [lambda: conv_tile(win, 0, 0, pq[0:2]), lambda: conv_tile(win, 1, 1, pq[2:4]), lambda: conv_tile(win, 2, 2)]
    ST3 = [("ST", k) for k in range(3)]; ST4 = ST3 + [("ST", 3)]
    bar("B0", XTr(0, 9))
    CV = {}; KK = {}
    late_setup()
    CV[0] = [f() for f in conv3(0)]
    bar("B1", ST3 + [("PATCH",)])
    prs = norm_head(0, 3)
    cvx = conv_tile("X", 0, 3)
    for tt in range(3): norm_tile(0, tt, CV[0][tt][0], prs[tt])
    late_setup2()
    O3 = [("O", k) for k in range(3)]; OUT3 = [("OUT", k) for k in range(3)]
    bar("B2", [("H", 0), ("PATCH",), ("RG", "O")] + O3 + ST3 + XTr(9, 16))
    wstep(firstX, max(lastHO + 1, 6))
    KXp, QXp = (KX[0:4], KX[4:6]), (QX[0:4], QX[4:6])
    def kstep(w, upto):
        kk = KK.setdefault(w, [])
        while len(kk) < upto:
            n_ = len(kk)
            kk.append(gemm(w, n_, "K", fr, None, kk[0]["hi"] if n_ == 1 else None))
    def convK(cw, kw, kpre):
        cf = conv3(cw) if cw is not None else None
        if cw is not None: CV[cw] = []
        for tt in range(3):
            if cw is not None: CV[cw].append(cf[tt]())
            if kw is not None and tt < kpre: kstep(kw, tt + 1)
    eo = CFG["eo"]
    convK(1, 0, CFG["k0i"])
    for win in range(4):
        nxt = win + 1 if win < 3 else None
        prv = win - 1 if win else None
        n2 = win + 2 if (win + 2 < 4) else None
        VA = []
        bar(f"Bs{win}", ST4 + O3 + OUT3[eo:] + (XTr(0, 16) + [("RG", k) for k in ("H", "O", "X0", "X1")] + [("H", 1)] if win == 0 else []))
        if win == 0:
            wstep(CFG["rf_at"])
            for r in range(9): xrow(14 + r, r, dt=90)
            wstep(24, 24)
        if nxt is not None: prs = norm_head(nxt, 4 if win == 0 else 3)
        if win == 0:
            norm_tile("X", 0, cvx[0], prs[3])
            bar("Bhx", [("HX",)])
        kstep(win, 3)
        kk = KK[win]; Ks = [kk[0]["K"], kk[1]["K"], kk[2]["K"], KXp]; qpd = kk[2]["hi"]
        if nxt is not None: norm_tile(nxt, 0, CV[nxt][0][0], prs[0])
        if win == 0:
            if nxt is not None: norm_tile(nxt, 1, CV[nxt][1][0], prs[1])
            gemm(0, "X", "KQ", fr, VA)
        if win == 3: sX = scores(win, "X", Ks, QXp)
        q0 = gemm(win, 0, "QV", fr, VA, qpd)["Q"]
        if win == 3: pX = softmax(win, "X", sX)
        if prv is not None: out_rows(prv, range(2 * eo, 4))
        if nxt is not None and win: norm_tile(nxt, 1, CV[nxt][1][0], prs[1])
        if prv is not None: out_rows(prv, range(4, 7))
        if nxt is not None: norm_tile(nxt, 2, CV[nxt][2][0], prs[2])
        s0 = scores(win, 0, Ks, q0)
        q1 = gemm(win, 1, "QV", fr, VA, qpd)["Q"]
        p0 = softmax(win, 0, s0)
        s1 = scores(win, 1, Ks, q1)
        q2 = gemm(win, 2, "QV", fr, VA, qpd)["Q"]
        if win == 0:
            gemm(0, "X", "V", fr, VA)
            P.tag = "vx"
            P.v("v_cmp_gt_u32", "vcc", HB + 256, aRD)
            for dt in range(3):
                for k in range(2):
                    r = VB[4 * dt + 2 + k]; P.v("v_cndmask_b32", r, 0, r, "vcc")
        p1 = softmax(win, 1, s1)
        o0 = pv(win, 0, p0, VA)
        s2 = scores(win, 2, Ks, q2)
        onorm(win, 0, o0)
        o1 = pv(win, 1, p1, VA)
        if win < 3: sX = scores(win, "X", Ks, QXp)
        else: oX = pv(win, "X", pX, VA)
        onorm(win, 1, o1)
        pa0 = proj_init(win, 0, CV[win][0][1])
        bar(f"Ba{win}", ST4 + [("O", 0), ("O", 1), ("H", 0), ("H", 1)] + OUT3 + (RGr + XTr(9, 16) if win == 0 else []))
        if win == 0:
            clk[0] = 0
            for r in range(9, 16): xrow(14 + r, r)
        proj_tile(win, 0, pa0)
        p2 = softmax(win, 2, s2)
        o2 = pv(win, 2, p2, VA)
        pa1 = proj_init(win, 1, CV[win][1][1])
        proj_tile(win, 1, pa1)
        onorm(win, 2, o2)
        if win == 3:
            onorm(win, "X", oX)
            P.tag = "xaddr"
            xa = ra.q(); axrd, astx, e1_, e2_ = xa[0], xa[1], xa[2], xa[3]
            P.s("s_lshl_b32", sT3[0], sW, 8)
            P.v("v_subrev_u32", axrd, sT3[0], aXW128)
            P.v("v_subrev_u32", e1_, HB, aRD)
            P.v("v_bfe_u32", e2_, e1_, 4, 4)
            P.v("v_cmp_gt_u32", "vcc", 4, e2_)
            P.v("v_mul_u32_u24", e2_, 7 * 86016, e2_)
            P.v("v_lshrrev_b32", e1_, 8, e1_)
            P.v("v_lshl_add_u32", e1_, e1_, 3, e2_)
            P.s("s_mul_i32", sTMP, sCOL, 7 * 384)
            P.s("s_add_u32", sTMP, sTMP, sWOFF)
            P.s("s_add_u32", sTMP, sTMP, 6 * 86016)
            P.v("v_add_u32", e1_, sTMP, e1_)
            P.v("v_bfrev_b32", e2_, 2)
            P.v("v_cndmask_b32", astx, e2_, e1_, "vcc")
        pa2 = proj_init(win, 2, CV[win][2][1])
        if nxt is not None and CFG["kb"]: kstep(nxt, CFG["kb"])
        bar(f"Bb{win}", [("O", 2), ("OX",)] + OUT3[:eo] + (XTr(0, 9) if win == 0 else []) + (XTr(9, 16) if win == 1 else []))
        proj_tile(win, 2, pa2)
        out_rows(win, range(0, 2 * eo))
        if win < 3:
            pX = softmax(win, "X", sX); oX = pv(win, "X", pX, VA); onorm(win, "X", oX)
            convK(n2, nxt, CFG["ki"])
    pa = proj_init(3, "X", None)
    proj_tile(3, "X", pa, axrd, astx)
    bar("Bz", OUT3[eo:])
    out_rows(3, range(2 * eo, 7))
    return P, ra, nfixed

def emit(path, mode="idx", stamps=False, trace=None, **kw):
    P, ra, nfixed = gen(stamps)
    head = []
    late = [(set(V(4 * k, 4).regs()), [4 * k]) for k in range(5)] + [(set(convA.regs()), [convA.i + 4 * k for k in range(9)])]
    skw = {k: CFG[k] for k in ("kahead", "window", "merge", "reserve", "vm_gap", "l2lat", "inflight", "st_gap", "w_gap", "w_wt", "mslack", "ldsq", "ldslat", "fslack", "vwin", "kscan", "bw", "tagoff") if k in CFG}
    lines, st, marks = schedule5(P.ins, list(range(20, NPOOL, 4)), late, ra.octs, nfixed=nfixed, t0=250, trace=trace, **skw)
    print("sim", st, marks)
    cnt = {}
    for i in P.ins:
        for x in flat(i): cnt[x.kind] = cnt.get(x.kind, 0) + 1
    print(cnt)
    if stamps:
        FS = list(range(3, 16)) + [47, 50, 51] + list(range(93, 102))
        nl = []; k = 0
        def stamp(k):
            return ["    s_memtime s[82:83]", "    s_waitcnt lgkmcnt(0)", f"    s_sub_u32 s{FS[k]}, s82, s78"]
        for l in lines:
            if "s_barrier" in l:
                nl.append(l); nl += stamp(k); k += 1
            else: nl.append(l)
        nl += stamp(k)
        nl += ["    s_waitcnt vmcnt(0)"] + stamp(k + 1)
        nl += ["    s_memrealtime s[82:83]", "    s_waitcnt lgkmcnt(0)", "    v_mov_b32 v1, 0"]
        nl += [f"    v_writelane_b32 v1, s{FS[j]}, {j}" for j in range(k + 2)]
        nl += ["    v_writelane_b32 v1, s80, 62", "    v_writelane_b32 v1, s82, 63",
               "    s_mov_b32 s74, 0x10000000", "    s_mov_b32 s75, 0x20000",
               "    v_mbcnt_lo_u32_b32 v0, -1, 0", "    v_mbcnt_hi_u32_b32 v0, -1, v0", "    v_lshlrev_b32 v0, 2, v0",
               "    s_lshl_b32 s82, s2, 2", "    s_add_u32 s82, s82, s36", "    s_lshl_b32 s82, s82, 8",
               "    buffer_store_dword v1, v0, s[72:75], s82 offen"]
        lines = nl
    lines = [l.replace("s_getpc_b64 s[88:89]", "s_getpc_b64 s[88:89]\nL_pc:").replace("CODE_REMAIN", "L_end-L_pc") for l in lines]
    src = open("cdna_kernels/" + NAME + ".s.ref").read().split("\n")
    hdr = [l for l in src if l.startswith(";") and "@launch" not in l]
    txt = "\n".join(hdr) + f"\n; @launch grid=(256,1,1) block=(256,1,1) lds={LDS_TOTAL}\n"
    txt += f""".amdgcn_target "amdgcn-amd-amdhsa--gfx950"
.text
.globl {NAME}_kernel
.p2align 8
.type {NAME}_kernel,@function
{NAME}_kernel:
""" + "\n".join(head) + "\n" + "\n".join(lines) + f"""
L_end:
    s_endpgm
.section .rodata,"a"
.p2align 6
.amdhsa_kernel {NAME}_kernel
  .amdhsa_next_free_vgpr 512
  .amdhsa_next_free_sgpr 102
  .amdhsa_accum_offset 256
  .amdhsa_group_segment_fixed_size 0
  .amdhsa_kernarg_size 56
  .amdhsa_user_sgpr_count 2
  .amdhsa_user_sgpr_kernarg_segment_ptr 1
  .amdhsa_system_sgpr_workgroup_id_x 1
.end_amdhsa_kernel
"""
    open(path, "w").write(txt)

if __name__ == "__main__":
    import argparse
    ap = argparse.ArgumentParser()
    ap.add_argument("-o", default="cdna_kernels/" + NAME + ".s")
    ap.add_argument("--mode", default="idx")
    ap.add_argument("--stamps", action="store_true")
    ap.add_argument("--trace", default="")
    ap.add_argument("--cfg", default="")
    a = ap.parse_args()
    for kv in a.cfg.split(","):
        if kv:
            k, v = kv.split("="); CFG[k] = int(v) if v.lstrip("-").isdigit() else (float(v) if v.replace(".","").isdigit() else v)
    tr = [] if a.trace else None
    emit(a.o, a.mode, a.stamps, tr)
    if a.trace:
        open(a.trace, "w").write("\n".join(f"{t} {tag:12s} {txt}" for t, txt, tag in tr))
```

```python
import re, bisect
from sched import *
import sched
from sched2 import hazard_need, wait_need

class PI:
    __slots__ = ("txt", "kind", "rd", "wr", "res_rd", "res_wr", "srcc", "ab", "data", "tag")

QRE = re.compile(r"\bq\[(\d+):(\d+)\]|\bq(\d+)\b")

def vq_of(i):
    s = set()
    for x in flat(i):
        for r in x.rd | x.wr:
            if r[0] == "q": s.add(int(r[1:]) >> 2)
    return s

def schedule5(ins, pool, late_pool=None, octs=(), vm_gap=66, merge=120, t0=480, inflight=11.5, kahead=12, window=400,
              reserve=0, l2lat=700, nfixed=0, st_gap=130, w_gap=80, w_wt=1.5, mslack=10, ldsq=120, ldslat=75, dmaf=1.1, dmaw=1.3, accres=1, fslack=0, tagoff=None, vwin=400, kscan=60, bw=0.25, tstall=2200, hbmlat=1500, trace=None):
    build_dag(ins)
    n = len(ins)
    vqs = [vq_of(i) for i in ins]
    octs = set(octs)
    mate = {}
    for a in octs: mate[a] = a + 1; mate[a + 1] = a
    for k in range(n):
        vqs[k] = vqs[k] | {mate[v] for v in vqs[k] if v in mate}
    users = {}
    for i in ins:
        for v in vqs[i.idx]: users.setdefault(v, []).append(i.idx)
    remaining = {v: len(u) for v, u in users.items()}
    phys = {}
    free = [(-1000 + k, b) for k, b in enumerate(pool)]
    fclock = [0]
    late_left = [[set(i.idx for i in ins if (i.rd | i.wr) & rs), qs] for rs, qs in (late_pool or [])]
    isM = [(not i.sub) and i.kind in ("mfma", "smf") for i in ins]
    isVM = [any(x.kind in ("vld", "vst", "dma") for x in flat(i)) for i in ins]
    isDS = [any(x.kind in ("dsr", "dsw") for x in flat(i)) for i in ins]
    isW = [any(x.kind == "dsw" for x in flat(i)) for i in ins]
    vdst = [any(r[0] == 'q' for r in i.wr) for i in ins]
    urgent = [i.tag.startswith(('wtr', 'wload', 'dma', 'fin', 'arr', 'poll', 'chk')) for i in ins]
    vec_free = 0; lds_free = 0; ds_done = 0; dw_free = 0; valu_end = -100; last_kind = ""
    feed = {}
    for i in ins:
        if i.kind == "dsr":
            c = [s_ for (s_, l) in i.succs if isM[s_] and (ins[s_].ab & i.wr)]
            if c: feed[i.idx] = min(c)
    unM = [i.idx for i in ins if isM[i.idx]]
    unI = list(range(n))
    for i in ins:
        i.prio = i.idx - i.bias + (tagoff.get(i.tag, 0) if tagoff else 0)
        i.npred = len(i.preds); i.rt = 0
    unM.sort(key=lambda k: (ins[k].prio, k))
    issued = [None] * n
    gate = [-1] * n
    for i in ins:
        gte = -1
        for p in i.preds:
            gte = max(gte, p if (ins[p].kind == "bar" or ins[p].tag.startswith("chk")) else gate[p])
        gate[i.idx] = gte
    avail = [i for i in ins if i.npred == 0]
    st = dict(t=t0, pos=0, idle=0, nop=0, wait=0, minfree=99)
    lines = []; hist = []; lg = []; vm = []; marks = []
    mf_free = 0; vm_free = 0; vmq = []
    def mapname(r, tmp):
        if r[0] != "q": return r
        k = int(r[1:]); b = phys.get(k >> 2, tmp.get(k >> 2))
        return f"v{b + (k & 3)}"
    def conv(x, tmp):
        p = PI()
        def sub(m):
            if m.group(3) is not None:
                return mapname("q" + m.group(3), tmp)
            a, b = int(m.group(1)), int(m.group(2))
            base = phys.get(a >> 2, tmp.get(a >> 2))
            return f"v[{base + (a & 3)}:{base + (a & 3) + b - a}]"
        p.txt = QRE.sub(sub, x.txt); p.kind = x.kind; p.tag = x.tag
        p.rd = {mapname(r, tmp) for r in x.rd}; p.wr = {mapname(r, tmp) for r in x.wr}
        p.res_rd = x.res_rd; p.res_wr = x.res_wr
        p.srcc = tuple(mapname(r, tmp) for r in x.srcc); p.ab = {mapname(r, tmp) for r in x.ab}
        p.data = {mapname(r, tmp) for r in x.data}
        return p
    def tentative(i):
        need = sorted(v for v in vqs[i.idx] if v not in phys)
        if not need: return {}
        fd = {b: tm for tm, b in free}
        out = {}
        for v in need:
            if v in octs:
                c = [(max(fd[b], fd[b + 4]), b) for b in fd if b % 8 == 0 and b + 4 in fd]
                if not c: c = [(max(fd[b], fd[b + 4]), b) for b in fd if b + 4 in fd]
                if not c: return None
                b = min(c)[1]; out[v] = b; out[v + 1] = b + 4; del fd[b]; del fd[b + 4]
        for v in need:
            if v in mate: continue
            if not fd: return None
            recent = fclock[0] - 2
            c = [((b ^ 4) in fd and oct_soon[0], tm > recent, tm, b) for b, tm in fd.items()]
            b = min(c, key=lambda x: (x[0], x[1], x[2]))[3]; out[v] = b; del fd[b]
        return out
    oct_soon = [True]
    def emit_wait(nl, nv):
        nonlocal lg, vm
        t = st["t"]; w = []
        if nv is not None:
            while nv > 0 and vm[len(vm) - nv][1] + 400 <= t: nv -= 1
            nv = min(nv, 63); w.append(f"vmcnt({nv})"); vm = vm[len(vm) - nv:] if nv else []
        if nl is not None:
            while nl > 0 and lg[len(lg) - nl][1] + mslack <= t: nl -= 1
            nl = min(nl, 15); w.append(f"lgkmcnt({nl})"); lg = lg[len(lg) - nl:] if nl else []
        lines.append("    s_waitcnt " + " ".join(w))
        if trace is not None: trace.append((t, "wait " + " ".join(w), ""))
        st["pos"] += 1; st["t"] += 4; st["wait"] += 1
    def dma_busy(t): return any(a > t and a < t + 300 and w >= 1 for a, w in vmq[-16:])
    def vm_block():
        t = st["t"]
        pend = sorted([x for x in vmq if x[0] > t])
        tot = sum(w for _, w in pend); e = t
        for a, w in pend:
            if tot <= inflight: break
            tot -= w; e = a
        return e
    peak_cache = {}
    def peaks(upto):
        if peak_cache.get("v") is not None and peak_cache["upto"] >= upto: return peak_cache["v"]
        cur = 0; pk = 0; seen = set(); rem = {}
        out = {}
        for idx in unI:
            if idx > upto: break
            out[idx] = pk
            for v in vqs[idx]:
                if v not in phys and v not in seen:
                    seen.add(v); cur += 1
            pk = max(pk, cur)
            for v in vqs[idx]:
                r = rem.get(v, remaining[v]) - 1; rem[v] = r
                if r == 0: cur -= 1
        peak_cache["v"] = out; peak_cache["upto"] = upto
        return out
    def can_alloc(i):
        need = sum(1 for v in vqs[i.idx] if v not in phys)
        if need == 0: return True
        if need > len(free): return False
        if tentative(i) is None: return False
        if i.idx == unI[0]: return True
        pk = peaks(maxidx)[i.idx]
        return len(free) - need >= pk + (reserve if pk else 0)
    while avail:
        t = st["t"]
        vb = None
        base_idx = None
        for idx in unI:
            if not isVM[idx] and ins[idx].kind != "salu" and not ins[idx].tag.startswith("wtr"):
                base_idx = idx; break
        if base_idx is None: base_idx = unI[0]
        lim = base_idx + window
        cand = [i for i in avail if i.prio <= lim or (i.prio <= base_idx + vwin and all(v in phys for v in vqs[i.idx]))]
        if not cand: cand = [min(avail, key=lambda i: i.idx)]
        if unI[0] < nfixed: cand = [ins[unI[0]]]; vb = 0
        maxidx = max(i.idx for i in cand)
        def eff(i):
            nonlocal vb
            e = i.rt
            if isM[i.idx]: e = max(e, mf_free)
            if isVM[i.idx]:
                if vb is None: vb = vm_block()
                e = max(e, vm_free, vb)
            if isDS[i.idx] and len(lg) >= 14: e = max(e, lg[0][1] + mslack)
            if isDS[i.idx]: e = max(e, lds_free - ldsq)
            if isDS[i.idx]: e = max(e, dw_free)
            return e
        rank = {}
        def mk_rank():
            k = 0; blocked = set()
            for m in unM[:kscan]:
                gte = gate[m]
                blk = gte >= 0 and (issued[gte] is None)
                if not blk:
                    for p in ins[m].preds:
                        if issued[p] is None and (ins[p].kind in VALU_KINDS or p in blocked): blk = True; break
                rank[m] = k
                if blk: blocked.add(m); k += bw
                else: k += 1
        def near(i):
            if not rank: mk_rank()
            return rank.get(feed[i.idx], 999) <= kahead
        ok = []
        for i in cand:
            if i.idx in feed and vdst[i.idx] and not near(i): continue
            if can_alloc(i): ok.append(i)
        if not ok:
            ok = [i for i in cand if can_alloc(i)]
        if not ok:
            o_ = min(avail, key=lambda i: i.idx)
            maxidx = max(maxidx, o_.idx)
            assert can_alloc(o_), ("register deadlock", o_.txt, free)
            ok = [o_]
        rdy = [i for i in ok if eff(i) <= t]
        afterM = last_kind in ("mfma", "smf")
        msoon = any(isM[i.idx] and i.rt <= t + 24 for i in ok)
        vpen = t < valu_end + 8
        def key(i):
            mem = isDS[i.idx] or isVM[i.idx]
            if mem:
                if vpen: c = 3 if msoon else (0 if (urgent[i.idx] or i.idx in feed) else 1)
                elif isW[i.idx]: c = -1 if afterM or not msoon else 2
                elif urgent[i.idx]: c = -3
                elif i.idx in feed: c = -2
                else: c = -0.5
            elif i.kind == "salu" and msoon and t >= vec_free: c = 2.5
            elif urgent[i.idx]: c = 0
            else: c = 1
            return (c, i.prio, i.idx)
        def hz(i): return hazard_need(hist, st["pos"], conv(flat(i)[0], tentative(i)))
        pick = None
        if t < vec_free:
            ndone = 0
            for (o, dn) in lg:
                if dn + fslack <= t: ndone += 1
                else: break
            useful = any(o.kind == "dsr" for (o, dn) in lg[:ndone])
            nvd = 0
            for (o, dn) in vm:
                if dn + 100 <= t: nvd += 1
                else: break
            usefulv = nvd > 0 and vm[nvd - 1][0].tag.startswith("wload")
            if useful or usefulv:
                emit_wait(len(lg) - ndone if useful else None, len(vm) - nvd if usefulv else None); st["fw"] = st.get("fw", 0) + 1
                continue
            sc = sorted([i for i in rdy if i.kind == "salu" or (i.kind == "bar" and wait_need(lg, vm, conv(i, {})) == (None, None))], key=key)
            sc = [i for i in sc if hz(i) == 0]
            if sc: pick = sc[0]
            else:
                st["t"] = vec_free; continue
        for i in sorted([i for i in rdy if isM[i.idx]], key=key) if pick is None else []:
            if hz(i) == 0: pick = i; break
        if pick is None:
            if mf_free > t and not (afterM and any(isDS[i.idx] or isVM[i.idx] for i in rdy)):
                nxt = sorted([i for i in ok if isM[i.idx] and i.rt <= mf_free], key=key)
                if nxt and nxt[0].rt <= t + 4:
                    nl, nv = wait_need(lg, vm, conv(nxt[0], tentative(nxt[0])))
                    if nl is not None or nv is not None:
                        emit_wait(nl, nv); continue
            for i in sorted([i for i in rdy if not isM[i.idx]], key=key):
                if hz(i) == 0: pick = i; break
        if pick is None:
            fut = [eff(i) for i in ok if eff(i) > t]
            nt = min(fut) if fut else None
            if rdy and not (nt is not None and nt - t <= 8):
                pick = min(rdy, key=lambda i: (hz(i), key(i)))
            else:
                st["idle"] += nt - t
                if trace is not None: trace.append((t, f"<<< idle {nt-t}", ""))
                st["t"] = nt; continue
        avail.remove(pick)
        tmp = tentative(pick)
        assert tmp is not None, ("out of registers", pick.txt, pick.tag)
        for v, b in tmp.items():
            phys[v] = b; free = [f for f in free if f[1] != b]
        st["minfree"] = min(st["minfree"], len(free))
        tissue = None; pick_arr = 0
        for x0 in flat(pick):
            x = conv(x0, {})
            if x.kind in ("dsr", "dsw") and len(lg) >= 15: emit_wait(13, None)
            nl, nv = wait_need(lg, vm, x)
            if nl is not None or nv is not None: emit_wait(nl, nv)
            hn = hazard_need(hist, st["pos"], x)
            if hn:
                lines.append(f"    s_nop {hn-1}")
                if trace is not None: trace.append((st["t"], f"nop {hn}", ""))
                st["pos"] += hn; st["t"] += 4 * hn; st["nop"] += hn
            if x.kind in ("mfma", "smf") and st["t"] < mf_free: st["t"] = mf_free
            if x.kind not in ("salu", "bar", "smem") and st["t"] < vec_free: st["t"] = vec_free
            if x.kind in ("dsr", "dsw", "vld", "vst", "dma") and st["t"] < valu_end + 8:
                st["vpen"] = st.get("vpen", 0) + valu_end + 8 - st["t"]; st["t"] = valu_end + 8
            if x.kind in ("dsr", "dsw") and st["t"] < dw_free: st["t"] = dw_free
            if tissue is None: tissue = st["t"]
            lines.append("    " + x.txt + (f"    ; {x.tag}" if x.tag else ""))
            if trace is not None: trace.append((st["t"], x.txt + f"   [free {len(free)}]", x.tag))
            hist.append((x, st["pos"])); st["pos"] += 1
            if x.kind in ("dsr", "dsw"):
                occ = (16 if "b128" in x.txt else 8) * (2 if x.kind == "dsw" else 1)
                if dma_busy(st["t"]): occ = int(occ * dmaf)
                lds_free = max(lds_free, st["t"]) + occ
                ds_done = lds_free + ldslat
                lg.append((x, ds_done))
            if x.kind in ("vld", "vst", "dma"):
                arr = max(pick.arrive, st["t"] + (hbmlat if (x.tag.startswith("dma") and st["t"] > 2000) else l2lat))
                arr = max([arr] + [a for _, a in vm[-1:]])
                vm.append((x, arr))
                big = "x4" in x.txt
                isw = x.tag.startswith("wload")
                vm_free = st["t"] + (st_gap if x.kind == "vst" else w_gap if isw else vm_gap if big else 32)
                if x.kind != "vst": vmq.append((arr, (w_wt if isw else 1.0) if big else (1.4 if x.tag.startswith("dma touch") else 0.2)))
                pick_arr = arr
            if x.kind in ("mfma", "smf"):
                mf_free = st["t"] + 16; vec_free = st["t"] + COST[x.kind]
            if x.kind == "bar" or "cbranch_vcc" in x.txt: marks.append((st["t"], x.tag))
            if x.kind == "dsw":
                big = "b128" in x.txt
                kf = dmaw if dma_busy(st["t"]) else 1
                sm_ = "b32" in x.txt
                dw_free = st["t"] + int((54 if big else 16 if sm_ else 30) * kf)
                st["t"] += int((21 if big else 8 if sm_ else 13) * kf)
            elif x.kind == "vst": st["t"] += 21 if "x4" in x.txt else 13
            elif x.kind in ("mfma", "smf", "bar"): st["t"] += 4
            else: st["t"] += COST[x.kind]
            if x.kind not in ("salu", "bar"): last_kind = x.kind
            if x.kind in VALU_KINDS: valu_end = st["t"]
            if x.tag.endswith("STALL"): st["t"] = max(st["t"], tstall)
        issued[pick.idx] = tissue
        unI.remove(pick.idx)
        if isM[pick.idx]: unM.remove(pick.idx)
        for v in vqs[pick.idx]:
            remaining[v] -= 1
            if remaining[v] == 0:
                fclock[0] += 1; free.append((fclock[0], phys[v]))
        for ll in late_left:
            if ll[1] is None: continue
            ll[0].discard(pick.idx)
            if not ll[0]:
                for b in ll[1]:
                    fclock[0] += 1; free.append((fclock[0], b))
                ll[1] = None
        peak_cache["v"] = None
        for (s_, l) in pick.succs:
            c = ins[s_]
            if l == sched.LAT_VM: c.rt = max(c.rt, pick_arr)
            elif l in (sched.LAT_DS, 60) and isDS[pick.idx]: c.rt = max(c.rt, ds_done)
            else: c.rt = max(c.rt, tissue + l)
            c.npred -= 1
            if c.npred == 0: avail.append(c)
    return lines, st, marks
```

```python
import sys, math, struct
from sched import *
from sched5 import schedule5
import sched

NAME = "standalone__window_attn_davit__vision"
def f32bits(x): return struct.unpack("<I", struct.pack("<f", x))[0]

ROW = 3744; PIX = 416
XT = 0
SM = 59904
HX_OFF, OX_OFF, X0X_OFF = 0, 1536, 3072
HB = SM + 4608
H_OFF = [1024, 25600]; BC_OFF = 19456; ST_OFF = 23552; O_OFF = 44032
ST2D = O_OFF + 16384 - ST_OFF
RING = HB + 62464
NR = 3
OUTB = RING; OPX = 400
LDS_TOTAL = RING + 36864
SRB = HB + H_OFF[1]
LOC = {"R0": RING, "R1": RING + 12288, "R2": RING + 24576, "H": HB + H_OFF[1], "O": HB + O_OFF, "X0": XT + 9 * ROW, "X1": XT + 9 * ROW + 12288}
PATCH = HB + O_OFF
assert LDS_TOTAL <= 163840

def V(i, n=1): return R("v", i, n)
def A(i, n=1): return R("a", i, n)
def S(i, n=1): return R("s", i, n)

NPOOL = 136
p_ = [NPOOL]
def fix(n):
    r = V(p_[0], n); p_[0] += n; return r
convA = fix(36); WOV = fix(32); KX = fix(6); QX = fix(6); VB = fix(12); ONES = fix(6); IDENT = fix(2)
aCV = fix(6)
aCV1 = [aCV[k] for k in range(3)]; aCV2 = [aCV[3 + k] for k in range(3)]
aOW = [fix(1) for _ in range(3)]
aW128, aW64, aRD, aBCR, aSTW, aXW128, aXW64, voffX, aOR, voffO, SIDX = [fix(1) for _ in range(11)]
SPARE = p_[0]
assert SPARE <= 256, SPARE

class RA:
    def __init__(s): s.n = 0; s.octs = []
    def q(s):
        s.n += 1; return R("q", 4 * (s.n - 1), 4)
    def o(s):
        s.octs.append(s.n); s.n += 2; return R("q", 4 * (s.n - 2), 8)
    def p(s): return s.q()[0:2]
    def rel(s, *rs): pass

def wunit(sl, ks):
    base = (sl * 6 + ks) * 12
    return [A(base + 4 * ft, 4) if base + 4 * ft < 256 else WOV[base + 4 * ft - 256:base + 4 * ft - 252] for ft in range(3)]
SL_K, SL_V, SL_Q, SL_O = 0, 1, 2, 3
SL_COL = {SL_Q: 0, SL_K: 384, SL_V: 768}

srdX, srdDW, srdWQ, srdWO, srdOUT = S(16, 4), S(20, 4), S(24, 4), S(28, 4), S(32, 4)
sW, sXCD, sCOL, sROW, sM0, sTMP, sTMP2, sWOFF, sC, sINV, sEPS = [S(36 + i) for i in range(11)]
sM6 = S(48, 2)
sM1, sM2, sM3, sS7 = S(52, 2), S(54, 2), S(56, 2), S(58, 2)
sMX = [S(60 + 2 * i, 2) for i in range(4)]
sSO = [S(68 + i) for i in range(4)]
sT3 = S(76, 2)
sA, sB, sD, sE = S(84), S(85), S(86), S(87)
sPC = S(88, 2)
sRS, sGS, sRW = S(90), S(91), S(92)

CFG = dict(xt0=2300, xdt=115, wdt=74, w0=-300, rf_at=24, hoist=3, xfirst=23, k0i=0, kb=1, ki=3, eo=2, bw=0.0, accres=0, su=1, tfirst=1, tstall=2400, soft=1, hard="B2/Bz", sdist=150, mix=0, split0=1, slots="R0/R1/R2/H/R0/R1/R2/R0/X0/X1/R1/R2/R0/X0/X1/R1/R2/R0/X0/X1/R1/R2/R0/X0", stflags="nt", w_gap=72, codepf=1, kahead=10, fslack=10, window=250)

def gen(stamps=False):
    P = Prog(); ra = RA()
    P.track_scc = True
    tid, lane, t_, g_ = V(0), V(1), V(2), V(3)
    tmp1, tmp2, tmp3, tmp4 = V(4), V(5), V(6), V(7)
    pixr, chr_, hi, vp = V(8), V(9), V(10), V(11)
    dA, dB, dC, cpd = V(12), V(13), V(14), V(15)
    tch, tch2, td1, td2 = V(16), V(17), V(18), V(19)
    H = P
    P.tag = "head"
    if stamps:
        H.raw("s_memtime s[78:79]", "smem", wr=["s78", "s79"]); H.raw("s_memrealtime s[80:81]", "smem", wr=["s80", "s81"])
    for k, o in ((16, 0), (20, 8), (24, 16), (28, 24), (32, 32)):
        H.raw(f"s_load_dwordx2 s[{k}:{k+1}], s[0:1], {o}", "smem", wr=[f"s{k}", f"s{k+1}"])
    if stamps: H.raw("s_load_dwordx2 s[72:73], s[0:1], 48", "smem", wr=["s72", "s73"])
    H.raw("s_cmp_ge_u32 s2, 256")
    H.raw("s_cbranch_scc1 L_end")
    clk = [CFG["xt0"]]
    H.s("s_lshr_b32", sCOL, S(2), 3, scc=True)
    if CFG["codepf"]:
        H.raw("s_getpc_b64 s[88:89]", wr=["s88", "s89"])
        H.v("v_lshrrev_b32", tmp1, 4, tid)
        H.v("v_lshlrev_b32", tmp1, 7, tmp1)
        H.v("v_lshl_add_u32", tmp1, sCOL, 11, tmp1)
        H.v("v_min_u32", tmp1, "CODE_REMAIN", tmp1)
        i = P.add(Ins(f"global_load_dword {cpd}, {tmp1}, s[88:89]", "vld", tmp1.regs() + ["s88", "s89"], cpd.regs(),
                      res_rd=("VM",), res_wr=("VM",)))
        i.arrive = clk[0]
    H.v("v_lshrrev_b32", tmp2, 6, tid)
    H.v("v_and_b32", lane, 63, tid)
    H.v("v_readfirstlane_b32", sW, tmp2)
    H.s("s_and_b32", sXCD, S(2), 7, scc=True)
    H.s("s_mov_b32", srdX[2], 19267584); H.s("s_mov_b32", srdX[3], "0x20000")
    H.s("s_mul_i32", sTMP, sW, 60)
    H.s("s_min_u32", sTMP, sTMP, 170, scc=True)
    H.s("s_mul_i32", sTMP2, sCOL, 7)
    H.s("s_sub_u32", sTMP2, sTMP2, 1, scc=True)
    H.v("v_add_u32", tmp3, sTMP, lane)
    H.v("v_mul_u32_u24", pixr, 2521, tmp3)
    H.v("v_lshrrev_b32", pixr, 16, pixr)
    H.v("v_mul_u32_u24", chr_, 26, pixr)
    H.v("v_sub_u32", chr_, tmp3, chr_)
    H.v("v_add_u32", tmp2, sTMP2, pixr)
    H.v("v_cmp_gt_u32", sT3, 24, chr_)
    H.v("v_cmp_gt_u32", "vcc", 224, tmp2)
    H.v("v_mul_u32_u24", tmp2, 384, tmp2)
    H.v("v_lshl_add_u32", tmp2, chr_, 4, tmp2)
    H.s("s_and_b64", "vcc", "vcc", sT3, scc=True)
    H.v("v_bfrev_b32", tmp4, 2)
    H.s("s_lshl_b32", sM0, sTMP, 4, scc=True)
    H.v("v_cndmask_b32", voffX, tmp4, tmp2, "vcc")
    H.s("s_mul_i32", sROW, sXCD, 28 * 86016)
    H.s("s_mov_b32", sGS, 86016)
    H.s("s_movk_i32", sRS, ROW)
    H.s("s_sub_u32", sSO[0], sROW, sGS, scc=True)
    H.s("s_cselect_b32", sSO[0], "0x40000000", sSO[0], rdscc=True)
    H.s("s_mov_b32", sSO[1], sROW)
    H.v("v_mul_u32_u24", tmp1, 43, lane)
    H.v("v_lshrrev_b32", tmp1, 8, tmp1)
    H.v("v_mul_u32_u24", tmp2, 384 - 96, tmp1)
    H.v("v_lshl_add_u32", dA, lane, 4, tmp2)
    H.s("s_movk_i32", srdDW[2], 3456); H.s("s_mov_b32", srdDW[3], srdX[3])
    H.s("s_mul_i32", sWOFF, sW, 96)
    H.s("s_lshl_b32", sD, sW, 10, scc=True)
    H.s("s_add_u32", sD, sD, HB + H_OFF[0], scc=True)
    H.s("s_mov_b32", "m0", sD)
    H.raw("s_waitcnt lgkmcnt(0)")
    P.tag = "dma dw"
    P.dma(dA, srdDW, sWOFF, [("DW",)]); P.ins[-1].arrive = clk[0]
    P.s("s_mov_b32", "m0", sM0)
    P.raw("s_nop 0")
    P.track_scc = False
    def arr(dt):
        clk[0] += dt; P.ins[-1].arrive = clk[0]
    def rows0():
        for r in range(9):
            P.tag = f"dma r{r}"
            if r:
                P.s("s_add_u32", "m0", "m0", sRS)
                if r > 1: P.s("s_add_u32", sSO[1], sSO[1], sGS)
                else: P.raw("s_nop 0")
            P.dma(voffX, srdX, sSO[1] if r else sSO[0], [("XT", r)], "nt"); arr(CFG["xdt"])
    def touches():
        P.tag = "dma touch"
        P.s("s_mov_b32", srdWQ[2], 221184); P.s("s_mov_b32", srdWQ[3], srdX[3])
        P.s("s_mov_b32", srdWO[2], 73728); P.s("s_mov_b32", srdWO[3], srdX[3])
        P.v("v_lshrrev_b32", tch, 2, tid)
        P.v("v_lshlrev_b32", tch, 7, tch)
        P.s("s_lshl_b32", sB, sCOL, 13)
        P.vld("buffer_load_dword", td1, tch, srdWQ, sB); arr(0)
        P.s("s_xor_b32", sB, sB, 31 << 13)
        P.vld("buffer_load_dword", td2, tch, srdWO, sB); arr(0)
    rows0()
    nfixed = len(P.ins)
    def patches():
        P.tag = "dma patch"
        P.v("v_mul_u32_u24", tmp1, 86, pixr)
        P.v("v_lshrrev_b32", tmp1, 8, tmp1)
        P.v("v_mul_u32_u24", tmp2, 3, tmp1)
        P.v("v_sub_u32", tmp2, pixr, tmp2)
        P.v("v_add_u32", tmp2, sTMP2, tmp2)
        P.v("v_cmp_le_i32", "vcc", 0, tmp2)
        P.v("v_mul_u32_u24", tmp1, 7 * 86016, tmp1)
        P.v("v_mul_u32_u24", tmp2, 384, tmp2)
        P.s("s_and_b64", "vcc", "vcc", sT3)
        P.v("v_lshl_add_u32", tmp2, chr_, 4, tmp2)
        P.v("v_add_u32", tmp2, tmp2, tmp1)
        P.v("v_cndmask_b32", vp, tmp4, tmp2, "vcc")
        for r in range(3):
            if r == 0:
                P.s("s_add_u32", "m0", sM0, PATCH); P.s("s_add_u32", sSO[1], sROW, 12 * 86016)
            else:
                P.s("s_add_u32", "m0", "m0", sRS); P.s("s_add_u32", sSO[1], sSO[1], sGS)
            P.dma(vp, srdX, sSO[1], [("PATCH",)], "nt"); arr(CFG["xdt"])
    if CFG['tfirst']: touches(); patches()
    else: patches(); touches()
    P.tag = "dw"
    P.v("v_and_b32", t_, 15, lane)
    P.v("v_lshrrev_b32", g_, 4, lane)
    P.v("v_lshrrev_b32", hi, 5, lane)
    P.v("v_lshl_add_u32", dA, t_, 1, sD)
    P.v("v_add_u32", dB, g_, hi)
    P.v("v_mul_u32_u24", dB, 96, dB)
    P.v("v_add_u32", dB, dB, dA)
    P.v("v_lshlrev_b32", dC, 2, g_)
    P.s("s_mov_b32", sE, "0x8276")
    P.v("v_bfe_u32", dC, sE, dC, 4)
    P.v("v_mul_u32_u24", dC, 96, dC)
    P.v("v_add_u32", dC, dC, dA)
    def cA(ct, p): return convA[(ct * 3 + p) * 4:(ct * 3 + p) * 4 + 4]
    for p in range(3):
        for ct in range(3):
            P.dsr("ds_read_u16", cA(ct, p)[3], (dA, dB, dC)[p], (5 * 96 if p == 0 else 0) + 32 * ct, res=[("DW",)])

    so_i = [1]
    def nso():
        so_i[0] = (so_i[0] + 1) % 4
        return sSO[so_i[0]]
    def xrow(r, slot, dt=None):
        P.tag = f"dma r{r}"
        so = nso()
        P.s("s_add_u32", "m0", sM0, XT + slot * ROW)
        P.s("s_add_u32", so, sROW, (r - 1) * 86016)
        P.dma(voffX, srdX, so, [("XT", slot)], "nt"); arr(CFG["xdt"] if dt is None else dt)
    P.tag = "addr"
    e1 = ra.q(); e2 = ra.q()
    shv, u_, yv, xv = e1[0], e1[1], e1[2], e1[3]
    cvb, oc, h1, h2 = e2[0], e2[1], e2[2], e2[3]
    P.v("v_and_b32", tmp1, 16, lane)
    P.v("v_add_u32", cvb, sWOFF, tmp1)
    P.v("v_add_u32", u_, 4, t_)
    P.v("v_bfe_u32", oc, u_, 3, 1)
    P.v("v_and_b32", xv, 7, u_)
    P.v("v_mul_u32_u24", h1, PIX, hi)
    P.v("v_mul_u32_u24", h2, 2 * ROW, hi)
    P.s("s_mov_b32", sS7[0], "0x08080808"); P.s("s_mov_b32", sS7[1], sS7[0])
    P.v("v_add_u32", tmp2, 1, oc)
    P.v("v_cndmask_b32", xv, xv, tmp2, sS7)
    P.v("v_cndmask_b32", yv, oc, 6, sS7)
    P.v("v_mad_u32_u24", tmp3, yv, 9, xv)
    P.v("v_mul_u32_u24", tmp3, PIX, tmp3)
    P.v("v_add3_u32", aCV1[0], tmp3, cvb, h1)
    P.v("v_add3_u32", aCV2[0], tmp3, cvb, h2)
    P.v("v_cndmask_b32", tmp3, 18, 2, sS7)
    P.v("v_mul_u32_u24", tmp3, PIX, tmp3)
    for j in (1, 2):
        P.v("v_add_u32", aCV1[j], aCV1[j - 1], tmp3); P.v("v_add_u32", aCV2[j], aCV2[j - 1], tmp3)
    P.v("v_and_b32", tmp1, 3, lane)
    P.v("v_mul_u32_u24", SIDX, "0x5555", tmp1)
    P.v("v_lshlrev_b32", shv, 4, lane)
    P.v("v_and_b32", shv, 16, shv)
    P.tag = "convA"
    P.begin_bundle()
    P.raw("s_mov_b32 exec_hi, 0")
    for ct in range(3): P.v("v_mov_b32", cA(ct, 0)[3], "0x3f80", rmw=True)
    P.raw("s_mov_b32 exec_hi, -1")
    P.end_bundle()
    for ct in range(3): P.v("v_lshlrev_b32", cA(ct, 0)[3], shv, cA(ct, 0)[3])
    for (ps, m0_, sh) in (((0,), "0x03000003", 2), ((1, 2), "0x000f000f", 4)):
        for j in range(4):
            if j == 0:
                P.raw(f"s_mov_b32 vcc_lo, {m0_}", wr=["vcc"]); P.raw("s_mov_b32 vcc_hi, vcc_lo", rd=["vcc"], wr=["vcc"])
            else: P.raw(f"s_lshl_b64 vcc, vcc, {sh}", rd=["vcc"], wr=["vcc"])
            for p in ps:
                for ct in range(3): P.v("v_cndmask_b32", cA(ct, p)[j], 0, cA(ct, p)[3], "vcc")

    P.tag = "addr"
    wo4 = ra.q(); wo4b = ra.q(); sr2 = ra.q(); aSR, aSRb, aXRD = sr2[0], sr2[1], sr2[2]; cxq = ra.q(); aCX1, aCX2 = cxq[0], cxq[1]
    for j in range(3):
        P.v("v_add_u32", tmp2, 64 * j, lane)
        P.v("v_mul_u32_u24", tmp3, 43691, tmp2)
        P.v("v_lshrrev_b32", tmp3, 18, tmp3)
        P.v("v_mul_u32_u24", tmp4, 6, tmp3)
        P.v("v_sub_u32", tmp2, tmp2, tmp4)
        P.v("v_lshlrev_b32", tmp2, 4, tmp2)
        if j: P.v("v_subrev_u32", tmp2, 1024 * j, tmp2)
        if j == 1: P.v("v_cmp_lt_u32", "vcc", 15, tmp3)
        for w4, stride in ((wo4, 1152), (wo4b, 384)):
            P.v("v_mul_u32_u24", tmp4, stride, tmp3)
            P.v("v_add_u32", w4[j], tmp2, tmp4)
            if j == 1:
                P.v("v_add_u32", tmp4, 32 * stride, w4[1])
                P.v("v_cndmask_b32", w4[3], w4[1], tmp4, "vcc")
    P.s("s_mul_i32", sRW, sW, 3072)
    P.v("v_lshrrev_b32", tmp2, 2, lane)
    P.v("v_mul_u32_u24", tmp2, 96, tmp2)
    P.v("v_and_b32", tmp3, 3, lane)
    P.v("v_lshl_add_u32", tmp2, tmp3, 3, tmp2)
    P.v("v_add_u32", aSR, sRW, tmp2)
    P.v("v_add_u32", aSRb, SRB, aSR)
    def wdma(sl, ks, slot):
        P.tag = f"wload{sl}.{ks}"
        stride = 384 if sl == SL_O else 1152
        srd = srdWO if sl == SL_O else srdWQ
        col = 0 if sl == SL_O else SL_COL[sl]
        w4 = wo4b if sl == SL_O else wo4
        row0 = 48 * ks if ks < 4 else 96 * (ks - 4) + 32
        P.s("s_add_u32", "m0", sRW, LOC[slot])
        so = nso(); P.s("s_add_u32", so, sWOFF, col + row0 * stride)
        for j in range(3):
            if ks >= 4 and j == 2:
                so = nso(); P.s("s_add_u32", so, sWOFF, col + (row0 + 32) * stride)
            vo = w4[3] if (ks >= 4 and j == 1) else w4[j]
            P.dma(vo, srd, so, [("RG", slot)], "", off=1024 * j); arr(CFG["wdt"])
        return slot
    def wtr(sl, ks, slot):
        P.tag = f"wtr{sl}.{ks}"
        u = wunit(sl, ks)
        for ft in range(3):
            for hb in range(2):
                P.dsr("ds_read_b64_tr_b16", u[ft][2 * hb:2 * hb + 2], aSR if slot[0] == "X" else aSRb,
                      LOC[slot] - (0 if slot[0] == "X" else SRB) + hb * 1536 + 32 * ft, res=[("RG", slot)])
    units = [(sl, ks) for sl in (SL_K, SL_Q, SL_V, SL_O) for ks in range(6)]
    SLOTS = CFG["slots"].split("/")
    assert len(SLOTS) == 24
    wstate = dict(d=0, t=0)
    def wstep(upto_dma, upto_tr=0):
        while wstate["d"] < upto_dma:
            n_ = wstate["d"]
            prev = [k for k in range(n_) if SLOTS[k] == SLOTS[n_]]
            if prev:
                while wstate["t"] <= prev[-1]:
                    wtr(*units[wstate["t"]], SLOTS[wstate["t"]]); wstate["t"] += 1
            wdma(*units[n_], SLOTS[n_]); wstate["d"] += 1
        while wstate["t"] < upto_tr:
            wtr(*units[wstate["t"]], SLOTS[wstate["t"]]); wstate["t"] += 1
    for r in range(9, 16):
        xrow(r, r)
        if CFG["mix"] and (r - 9) % CFG["mix"] == CFG["mix"] - 1:
            c0 = clk[0]; wstep(wstate["d"] + 1); clk[0] = c0 + 60
    clk[0] += CFG["w0"]
    firstO = 99; firstX = min(SLOTS.index("X0"), SLOTS.index("X1"))
    lastHO = max(k for k in range(24) if SLOTS[k] in ("H", "O"))
    wstep(firstX, max(lastHO + 1, 6))
    def late_setup():
        P.tag = "addr"
        for m, val in ((sM1, 0x22222222), (sM2, 0x44444444), (sM3, 0x88888888)):
            P.s("s_mov_b32", m[0], hex(val)); P.s("s_mov_b32", m[1], m[0])
        for k in range(4): P.v("v_mov_b32", ONES[k], "0x3f803f80" if k == 0 else ONES[0])
        P.v("v_lshlrev_b32", tmp1, 4, lane)
        P.v("v_add_u32", aRD, HB, tmp1)
        P.s("s_lshl_b32", sTMP, sW, 10)
        P.v("v_add_u32", aW128, sTMP, aRD)
        P.s("s_add_u32", sT3[1], sTMP, HB + BC_OFF)
        P.v("v_lshl_add_u32", aBCR, t_, 4, sT3[1])
        P.s("s_lshr_b32", sTMP, sW, 1)
        P.s("s_and_b32", sTMP2, sW, 1)
        P.s("s_lshl_b32", sTMP2, sTMP2, 3)
        P.s("s_lshl_b32", sT3[0], sTMP, 10)
        P.s("s_add_u32", sT3[0], sT3[0], sTMP2)
        P.s("s_add_u32", sA, sT3[0], HB + ST_OFF)
        P.v("v_lshl_add_u32", tmp2, t_, 4, sA)
        P.v("v_lshrrev_b32", tmp3, 2, t_)
        P.v("v_cmp_eq_u32", "vcc", tmp3, g_)
        P.v("v_add_u32", tmp3, 8, aBCR)
        P.v("v_cndmask_b32", aSTW, tmp3, tmp2, "vcc")
        P.s("s_add_u32", sT3[0], sT3[0], 4096)
        P.v("v_add_u32", aW64, sT3[0], aRD)
        P.s("s_mov_b32", sINV, hex(f32bits(1.0 / 192)))
        P.s("s_mov_b32", sEPS, hex(f32bits(1e-5)))
        P.v("v_and_b32", tmp1, 3, lane)
        P.v("v_mul_u32_u24", tmp3, 3 * PIX, tmp1)
        P.v("v_add_u32", tmp3, PATCH - 3 * PIX, tmp3)
        P.v("v_mov_b32", tmp4, XT + 6 * ROW)
        P.v("v_cmp_eq_u32", "vcc", 0, tmp1)
        P.v("v_cndmask_b32", tmp3, tmp3, tmp4, "vcc")
        P.v("v_add3_u32", aCX1, tmp3, cvb, h1)
        P.v("v_add3_u32", aCX2, tmp3, cvb, h2)
        P.v("v_lshl_add_u32", tmp2, g_, 2, tmp1)
        P.v("v_lshlrev_b32", tmp2, 4, tmp2)
        P.v("v_add_u32", aXRD, SM, tmp2)
        P.s("s_lshl_b32", sT3[0], sW, 8)
        P.v("v_add_u32", aXW128, sT3[0], aXRD)
        P.s("s_add_u32", sTMP, sTMP, 4)
        P.s("s_lshl_b32", sT3[0], sTMP, 8)
        P.s("s_add_u32", sT3[0], sT3[0], sTMP2)
        P.v("v_add_u32", aXW64, sT3[0], aXRD)
    def late_setup2():
        P.tag = "addr"
        P.s("s_mov_b32", srdOUT[2], 19267584); P.s("s_mov_b32", srdOUT[3], "0x20000")
        P.s("s_mov_b32", sC, hex(f32bits(48 ** -0.5 * math.log2(math.e))))
        for k in range(4):
            P.s("s_mov_b32", sMX[k][0], hex(0x11111111 << k)); P.s("s_mov_b32", sMX[k][1], hex(0x11111111 << k))
        P.v("v_cmp_gt_u32", "vcc", 16, lane)
        P.v("v_cndmask_b32", ONES[4], 0, ONES[0], "vcc")
        P.v("v_mov_b32", ONES[5], ONES[4])
        P.v("v_mov_b32", tmp3, "0x3f80")
        P.v("v_lshlrev_b32", tmp3, shv, tmp3)
        P.raw("s_mov_b32 vcc_lo, 0x00300003", wr=["vcc"]); P.raw("s_mov_b32 vcc_hi, 0x30000300", rd=["vcc"], wr=["vcc"])
        P.v("v_cndmask_b32", IDENT[0], 0, tmp3, "vcc")
        P.raw("s_lshl_b64 vcc, vcc, 2", rd=["vcc"], wr=["vcc"])
        P.v("v_cndmask_b32", IDENT[1], 0, tmp3, "vcc")
        P.s("s_add_u32", sTMP, sWOFF, OUTB)
        P.v("v_lshl_add_u32", tmp1, g_, 3, sTMP)
        P.v("v_mad_u32_u24", tmp3, yv, 7, xv)
        P.v("v_mul_u32_u24", tmp3, OPX, tmp3)
        P.v("v_add_u32", aOW[0], tmp3, tmp1)
        P.v("v_cndmask_b32", tmp3, 14, 2, sS7)
        P.v("v_mul_u32_u24", tmp3, OPX, tmp3)
        for j in (1, 2): P.v("v_add_u32", aOW[j], aOW[j - 1], tmp3)
        P.s("s_mul_i32", sTMP, sW, 40)
        P.v("v_add_u32", tmp1, sTMP, lane)
        P.v("v_min_u32", tmp2, 167, tmp1)
        P.v("v_mul_u32_u24", tmp3, 2731, tmp2)
        P.v("v_lshrrev_b32", tmp3, 16, tmp3)
        P.v("v_add_u32", tmp3, tmp3, tmp2)
        P.v("v_lshlrev_b32", tmp3, 4, tmp3)
        P.v("v_add_u32", aOR, OUTB, tmp3)
        P.s("s_mul_i32", sTMP2, sCOL, 7 * 384)
        P.v("v_lshl_add_u32", tmp2, tmp1, 4, sTMP2)
        P.s("s_add_u32", sTMP, sW, 1)
        P.s("s_and_b32", sTMP, sTMP, 4)
        P.s("s_lshl_b32", sTMP, sTMP, 1)
        P.s("s_add_u32", sTMP, sTMP, 40)
        P.v("v_bfrev_b32", tmp4, 2)
        P.v("v_cmp_gt_u32", "vcc", sTMP, lane)
        P.v("v_cndmask_b32", voffO, tmp4, tmp2, "vcc")
        P.v("v_cmp_lt_u32", sM6, 23, tmp1)

    PAIR_OFF = [0, ROW, ROW + PIX, 2 * ROW, 2 * PIX]

    def pack3(acc, pd=None):
        a, b, c = acc
        P.v("v_cvt_pk_bf16_f32", a[0], a[0], a[1]); P.v("v_cvt_pk_bf16_f32", a[1], a[2], a[3])
        P.v("v_cvt_pk_bf16_f32", a[2], b[0], b[1]); P.v("v_cvt_pk_bf16_f32", a[3], b[2], b[3])
        if pd is None: pd = c[0:2]
        P.v("v_cvt_pk_bf16_f32", pd[0], c[0], c[1]); P.v("v_cvt_pk_bf16_f32", pd[1], c[2], c[3])
        return a, pd

    def conv_tile(win, tt, stat_tile, xp=None):
        sb = 1 if win in (1, 'X') else 0
        P.tag = f"conv{win}.{tt}"
        acc = [ra.q() for _ in range(3)]
        if win == "X":
            a1, a2, base = aCX1, aCX2, 0
            res = [("XT", r) for r in (6, 7, 8)] + [("PATCH",)]
        else:
            a1, a2, base = aCV1[tt], aCV2[tt], (win & 1) * 7 * ROW
            r0 = (win & 1) * 7
            res = [("XT", r0 + r) for r in sorted(set(list(range(2 * tt, 2 * tt + 4)) + [6, 7, 8]))]
        for ct in range(3):
            f = ra.q()
            P.dsr("ds_read_b128", f, a1, base + PAIR_OFF[2] + 32 * ct, res=res)
            P.mfma32(acc[ct], cA(ct, 0), f, 0)
        for sp, (pa, pb) in enumerate(((0, 1), (3, 4))):
            for ct in range(3):
                f = ra.o()
                P.dsr("ds_read_b128", f[0:4], a1, base + PAIR_OFF[pa] + 32 * ct, res=res)
                P.dsr("ds_read_b128", f[4:8], a2 if pb == 4 else a1, base + PAIR_OFF[pb] + 32 * ct, res=res)
                P.smf(acc[ct], cA(ct, 1 + sp), f, SIDX)
        P.tag = f"stat{win}.{tt}"
        xq = ra.q()
        if xp is None: xp = ra.p()
        for k in range(4): P.v("v_cvt_pk_bf16_f32", xq[k], acc[k >> 1][2 * (k & 1)], acc[k >> 1][2 * (k & 1) + 1])
        for k in range(2): P.v("v_cvt_pk_bf16_f32", xp[k], acc[2][2 * k], acc[2][2 * k + 1])
        if win == "X":
            P.dsw("ds_write_b128", aXW128, xq, X0X_OFF, res=[("X0X",)])
            P.dsw("ds_write_b64", aXW64, xp, X0X_OFF, res=[("X0X",)])
        sm, gr = ra.q(), ra.q()
        P.mfma32(gr, xq, xq, 0)
        P.mfma32(sm, ONES[0:4], xq, 0)
        P.mfma16(gr, xp, xp, gr)
        P.mfma16(sm, ONES[0:2], xp, sm)
        ra.rel(xq, xp)
        P.v("v_cndmask_b32", gr[0], gr[0], gr[1], sM1)
        P.v("v_cndmask_b32", gr[0], gr[0], gr[2], sM2)
        P.v("v_cndmask_b32", sm[1], gr[0], gr[3], sM3)
        P.dsw("ds_write_b64", aSTW, sm[0:2], sb * ST2D + 256 * stat_tile, res=[("ST", stat_tile + 4 * sb)])
        return acc, (xq, xp)

    def norm_head(win, ntiles):
        P.tag = f"fin{win}"
        a, b = ra.q(), ra.q()
        sb = 1 if win == 1 else 0
        sres = [("ST", k + 4 * sb) for k in range(ntiles)]
        P.dsr("ds_read_b128", a, aRD, ST_OFF + sb * ST2D, res=sres)
        P.dsr("ds_read_b128", b, aRD, ST_OFF + sb * ST2D + 1024, res=sres)
        P.v("v_add_f32", a[0], a[0], a[2]); P.v("v_add_f32", a[1], a[1], a[3])
        P.v("v_add_f32", b[0], b[0], b[2]); P.v("v_add_f32", b[1], b[1], b[3])
        P.v("v_add_f32", a[0], a[0], b[0]); P.v("v_add_f32", a[1], a[1], b[1])
        P.v("v_mul_f32", a[2], sINV, a[0])
        P.v("v_mul_f32", a[1], sINV, a[1])
        P.v("v_fma_f32", a[1], ("-%s", a[2]), a[2], a[1])
        P.v("v_max_f32", a[1], 0, a[1])
        P.v("v_add_f32", a[1], sEPS, a[1])
        P.v("v_rsq_f32", a[0], a[1])
        P.v("v_mul_f32", a[1], ("-%s", a[2]), a[0])
        P.dsw("ds_write_b64", aW128, a[0:2], BC_OFF, res=[("BC",)])
        prs = [b[0:2], b[2:4], a[2:4], a[0:2]]
        for k in range(ntiles): P.dsr("ds_read_b64", prs[k], aBCR, 256 * k, res=[("BC",)])
        if ntiles < 4: ra.rel(prs[3])
        return prs
    def norm_tile(kind, tt, acc, pr):
        P.tag = f"norm{kind}.{tt}"
        for q in range(12): P.v("v_fma_f32", acc[q >> 2][q & 3], acc[q >> 2][q & 3], pr[0], pr[1])
        ra.rel(pr)
        hq, hp = pack3(acc)
        if kind == "X":
            P.dsw("ds_write_b128", aXW128, hq, HX_OFF, res=[("HX",)])
            P.dsw("ds_write_b64", aXW64, hp, HX_OFF, res=[("HX",)])
        else:
            o = H_OFF[kind & 1] + tt * 6144
            P.dsw("ds_write_b128", aW128, hq, o, res=[("H", kind & 1)])
            P.dsw("ds_write_b64", aW64, hp, o, res=[("H", kind & 1)])
        ra.rel(hq, hp)

    def hfrag(f, win, tt, ks):
        if tt == "X": P.dsr("ds_read_b128", f, aXRD, HX_OFF + 256 * ks, res=[("HX",)])
        else: P.dsr("ds_read_b128", f, aRD, H_OFF[win & 1] + tt * 6144 + 1024 * ks, res=[("H", win & 1)])

    def gemm(win, tt, parts, fr, VA, pd=None):
        P.tag = f"{parts}{win}.{tt}"
        accs = {p: [ra.q() for _ in range(3)] for p in parts}
        for ks in range(6):
            f = ra.q(); hfrag(f, win, tt, ks)
            for p in parts:
                w = wunit({"K": SL_K, "V": SL_V, "Q": SL_Q}[p], ks)
                for dt in range(3):
                    d = accs[p][dt]
                    if p == "V": P.mfma32(d, f, w[dt], d if ks else 0)
                    else: P.mfma32(d, w[dt], f, d if ks else 0)
        out = {}
        for p in parts:
            if p == "V":
                for dt in range(3):
                    d = accs[p][dt]
                    if tt == 0:
                        VA.append(d); dst = d[0:2]
                    elif tt == 1: dst = VA[dt][2:4]
                    elif tt == 2: dst = VB[4 * dt:4 * dt + 2]
                    else: dst = VB[4 * dt + 2:4 * dt + 4]
                    P.v("v_cvt_pk_bf16_f32", dst[0], d[0], d[1]); P.v("v_cvt_pk_bf16_f32", dst[1], d[2], d[3])
                    if tt != 0: ra.rel(d)
            elif tt == "X":
                dst = KX if p == "K" else QX
                for dt in range(3):
                    d = accs[p][dt]
                    P.v("v_cvt_pk_bf16_f32", dst[2 * dt], d[0], d[1]); P.v("v_cvt_pk_bf16_f32", dst[2 * dt + 1], d[2], d[3])
                    ra.rel(d)
                out[p] = (dst[0:4], dst[4:6])
            else:
                out[p] = pack3(accs[p], pd); out['hi'] = accs[p][2][2:4]
        return out

    def scores(win, qt, Ks, qp):
        P.tag = f"S{win}.{qt}"
        s = [ra.q() for _ in range(4)]
        for kt in range(4): P.mfma32(s[kt], Ks[kt][0], qp[0], 0)
        for kt in range(4): P.mfma16(s[kt], Ks[kt][1], qp[1], s[kt])
        if qt != "X": ra.rel(*qp)
        return s
    def softmax(win, qt, s):
        P.tag = f"sm{win}.{qt}"
        sx = s[3][win]
        fre = [s[3][k] for k in range(4) if k != win]
        m, t2 = fre[0], fre[1]
        vals = [s[k >> 2][k & 3] for k in range(12)] + [sx]
        P.v("v_max3_f32", m, vals[0], vals[1], vals[12])
        P.v("v_max3_f32", t2, vals[2], vals[3], vals[4])
        P.v("v_max3_f32", m, m, vals[5], vals[6])
        P.v("v_max3_f32", t2, t2, vals[7], vals[8])
        P.v("v_max3_f32", m, m, vals[9], vals[10])
        P.v("v_max3_f32", m, m, t2, vals[11])
        P.v("v_mov_b32", t2, m)
        P.swap("v_permlane32_swap_b32", m, t2)
        P.v("v_max_f32", m, m, t2)
        P.v("v_mov_b32", t2, m)
        P.swap("v_permlane16_swap_b32", m, t2)
        P.v("v_max_f32", m, m, t2)
        P.v("v_mul_f32", m, sC, m)
        for x in vals:
            P.v("v_fma_f32", x, x, sC, ("-%s", m))
        for x in vals: P.v("v_exp_f32", x, x)
        a, b, c = s[0], s[1], s[2]
        P.v("v_cvt_pk_bf16_f32", a[0], a[0], a[1]); P.v("v_cvt_pk_bf16_f32", a[1], a[2], a[3])
        P.v("v_cvt_pk_bf16_f32", a[2], b[0], b[1]); P.v("v_cvt_pk_bf16_f32", a[3], b[2], b[3])
        P.v("v_cvt_pk_bf16_f32", c[0], c[0], c[1]); P.v("v_cvt_pk_bf16_f32", c[1], c[2], c[3])
        if win & 1: P.v("v_cvt_pk_bf16_f32", c[2 + (win >> 1)], 0, sx)
        else: P.v("v_cvt_pk_bf16_f32", c[2 + (win >> 1)], sx, 0)
        P.v("v_mov_b32", c[3 - (win >> 1)], 0)
        ra.rel(b, s[3])
        return a, c
    def pv(win, qt, pp, VA):
        P.tag = f"PV{win}.{qt}"
        pa, pb = pp
        oa = [ra.q() for _ in range(3)]; ls = ra.q()
        P.mfma32(ls, ONES[0:4], pa, 0)
        for dt in range(3): P.mfma32(oa[dt], VA[dt], pa, 0)
        P.mfma32(ls, ONES[2:6], pb, ls)
        for dt in range(3): P.mfma32(oa[dt], VB[4 * dt:4 * dt + 4], pb, oa[dt])
        ra.rel(pa, pb)
        return oa, ls
    def onorm(win, qt, ol):
        P.tag = f"on{win}.{qt}"
        oa, ls = ol
        P.v("v_rcp_f32", ls[0], ls[0])
        for q in range(12): P.v("v_mul_f32", oa[q >> 2][q & 3], oa[q >> 2][q & 3], ls[0])
        ra.rel(ls)
        oq, op = pack3(oa)
        if qt == "X":
            P.begin_bundle()
            P.s("s_mov_b64", "exec", sMX[win])
            P.dsw("ds_write_b128", aXW128, oq, OX_OFF, res=[("OX",)])
            P.dsw("ds_write_b64", aXW64, op, OX_OFF, res=[("OX",)])
            P.s("s_mov_b64", "exec", -1)
            P.end_bundle()
        else:
            o = O_OFF + qt * 6144
            P.dsw("ds_write_b128", aW128, oq, o, res=[("O", qt)])
            P.dsw("ds_write_b64", aW64, op, o, res=[("O", qt)])
        ra.rel(oq, op)

    def proj_init(win, tt, x0):
        P.tag = f"proj{win}.{tt}"
        if tt == "X":
            xq, xp = ra.q(), ra.p()
            P.dsr("ds_read_b128", xq, aXW128, X0X_OFF, res=[("X0X",)])
            P.dsr("ds_read_b64", xp, aXW64, X0X_OFF, res=[("X0X",)])
        else: xq, xp = x0
        acc = [ra.q() for _ in range(3)]
        for ct, x in enumerate((xq[0:2], xq[2:4], xp)): P.mfma16(acc[ct], IDENT, x, 0)
        return acc
    def proj_tile(win, tt, acc, axrd=None, astx=None):
        P.tag = f"proj{win}.{tt}"
        for ks in range(6):
            f = ra.q()
            if tt == "X": P.dsr("ds_read_b128", f, axrd, OX_OFF + 256 * ks, res=[("OX",)])
            else: P.dsr("ds_read_b128", f, aRD, O_OFF + tt * 6144 + 1024 * ks, res=[("O", tt)])
            w = wunit(SL_O, ks)
            for ct in range(3): P.mfma32(acc[ct], w[ct], f, acc[ct])
        for ct in range(3):
            d = acc[ct]
            P.v("v_cvt_pk_bf16_f32", d[0], d[0], d[1]); P.v("v_cvt_pk_bf16_f32", d[1], d[2], d[3])
            if tt == "X": P.vst("buffer_store_dwordx2", d[0:2], astx, srdOUT, sROW, 32 * ct, CFG["stflags"])
            else: P.dsw("ds_write_b64", aOW[tt], d[0:2], 32 * ct, res=[("OUT", tt)])
    def out_rows(win, rows):
        for r in rows:
            P.tag = f"out{win}.{r >> 1}"
            f = ra.q()
            P.dsr("ds_read_b128", f, aOR, r * 7 * OPX, res=[("OUT", r >> 1)] if r < 6 else [("OUT", k) for k in range(3)])
            so = nso(); P.s("s_add_u32", so, sROW, (win * 7 + r) * 86016)
            if r == 6:
                P.begin_bundle(); P.s("s_mov_b64", "exec", sM6)
            P.vst("buffer_store_dwordx4", f, voffO, srdOUT, so, 0, CFG["stflags"])
            if r == 6:
                P.s("s_mov_b64", "exec", -1); P.end_bundle()

    nsync = [0]
    def bar(tag, res):
        if tag in ("B0", "B1") or tag in CFG["hard"].split("/") or not CFG["soft"]:
            P.tag = tag; P.bar(res); return
        nsync[0] += 1; k = nsync[0]
        q = ra.q()
        res = list(res)
        P.tag = f"arr {tag}"
        P.v("v_mov_b32", q[0], k)
        i = P.dsw("ds_write_b32", aXW128, q[0], 4608, res=res + [("SY", k), ("FL",)]); i.res_rd |= set(res)
        P.tag = f"poll {k}"
        P.dsr("ds_read_b32", q[1], aRD, 0, res=[("SY", k)])
        P.tag = f"chk {k} {tag}"
        P.begin_bundle()
        P.v("v_cmp_gt_u32", "vcc", k, q[1])
        P.raw(f"s_cbranch_vccnz L_slow{k}\nL_back{k}:", "salu", rd=[], res_rd=res, res_wr=res)
        P.end_bundle()
    XTr = lambda a, b: [("XT", r) for r in range(a, b)]
    RGr = [("RG", k) for k in LOC]
    fr = None

    def conv3(win):
        pq = ra.q()
        return [lambda: conv_tile(win, 0, 0, pq[0:2]), lambda: conv_tile(win, 1, 1, pq[2:4]), lambda: conv_tile(win, 2, 2)]
    ST3 = [("ST", k) for k in range(3)]; ST4 = ST3 + [("ST", 3)]
    bar("B0", XTr(0, 9))
    CV = {}; KK = {}
    late_setup()
    P.tag = "addr"
    P.v("v_mov_b32", tmp1, 0)
    P.dsw("ds_write_b32", aXW128, tmp1, 4608, res=[("FL",)])
    CV[0] = [f() for f in conv3(0)]
    STB = [("ST", 4 + k) for k in range(4)]
    su = CFG["su"]
    bar("B1", ST3 + [("PATCH",), ("FL",), ("DW",), ("H", 0)] + (XTr(9, 16) if su == 0 else []))
    prs = norm_head(0, 3)
    cvx = conv_tile("X", 0, 3)
    cf = conv3(1); CV[1] = []
    for tt in range(3):
        norm_tile(0, tt, CV[0][tt][0], prs[tt])
        if su == 0: CV[1].append(cf[tt]())
    late_setup2()
    if su == 1: bar("B2", [("H", 0)] + XTr(9, 16))
    O3 = [("O", k) for k in range(3)]; OUT3 = [("OUT", k) for k in range(3)]
    KXp, QXp = (KX[0:4], KX[4:6]), (QX[0:4], QX[4:6])
    def kstep(w, upto):
        kk = KK.setdefault(w, [])
        while len(kk) < upto:
            n_ = len(kk)
            kk.append(gemm(w, n_, "K", fr, None, kk[0]["hi"] if n_ == 1 else None))
    def convK(cw, kw, kpre):
        cf = conv3(cw) if cw is not None else None
        if cw is not None: CV[cw] = []
        for tt in range(3):
            if cw is not None: CV[cw].append(cf[tt]())
            if kw is not None and tt < kpre: kstep(kw, tt + 1)
    eo = CFG["eo"]
    if su == 1: convK(1, 0, CFG["k0i"])
    for win in range(4):
        nxt = win + 1 if win < 3 else None
        prv = win - 1 if win else None
        n2 = win + 2 if (win + 2 < 4) else None
        VA = []
        bar(f"Bs{win}", ST4 + O3 + OUT3[eo:] + (XTr(0, 16) + [("RG", k) for k in ("H", "O", "X0", "X1")] + [("H", 0), ("H", 1), ("PATCH",)] + STB if win == 0 else []))
        if win == 0:
            wstep(CFG["rf_at"])
            for r in range(9): xrow(14 + r, r, dt=90)
            wstep(24, 24)
        if nxt is not None: prs = norm_head(nxt, 4 if win == 0 else 3)
        if win == 0:
            norm_tile("X", 0, cvx[0], prs[3])
            bar("Bhx", [("HX",)])
        kstep(win, 3)
        kk = KK[win]; Ks = [kk[0]["K"], kk[1]["K"], kk[2]["K"], KXp]; qpd = kk[2]["hi"]
        if nxt is not None: norm_tile(nxt, 0, CV[nxt][0][0], prs[0])
        if win == 0:
            if nxt is not None: norm_tile(nxt, 1, CV[nxt][1][0], prs[1])
            gemm(0, "X", "KQ", fr, VA)
        if win == 0 and CFG['split0']:
            q0 = gemm(win, 0, "Q", fr, VA, qpd)["Q"]
            norm_tile(nxt, 2, CV[nxt][2][0], prs[2])
            s0 = scores(win, 0, Ks, q0)
            q1 = gemm(win, 1, "Q", fr, VA, qpd)["Q"]
            gemm(win, 0, "V", fr, VA)
            p0 = softmax(win, 0, s0)
            s1 = scores(win, 1, Ks, q1)
            gemm(win, 1, "V", fr, VA)
            q2 = gemm(win, 2, "QV", fr, VA, qpd)["Q"]
        else:
            if win == 3: sX = scores(win, "X", Ks, QXp)
            q0 = gemm(win, 0, "QV", fr, VA, qpd)["Q"]
            if win == 3: pX = softmax(win, "X", sX)
            if prv is not None: out_rows(prv, range(2 * eo, 4))
            if nxt is not None and win: norm_tile(nxt, 1, CV[nxt][1][0], prs[1])
            if prv is not None: out_rows(prv, range(4, 7))
            if nxt is not None: norm_tile(nxt, 2, CV[nxt][2][0], prs[2])
            s0 = scores(win, 0, Ks, q0)
            q1 = gemm(win, 1, "QV", fr, VA, qpd)["Q"]
            p0 = softmax(win, 0, s0)
            s1 = scores(win, 1, Ks, q1)
            q2 = gemm(win, 2, "QV", fr, VA, qpd)["Q"]
        if win == 0:
            gemm(0, "X", "V", fr, VA)
            P.tag = "vx"
            P.v("v_cmp_gt_u32", "vcc", HB + 256, aRD)
            for dt in range(3):
                for k in range(2):
                    r = VB[4 * dt + 2 + k]; P.v("v_cndmask_b32", r, 0, r, "vcc")
        p1 = softmax(win, 1, s1)
        o0 = pv(win, 0, p0, VA)
        s2 = scores(win, 2, Ks, q2)
        onorm(win, 0, o0)
        o1 = pv(win, 1, p1, VA)
        if win < 3: sX = scores(win, "X", Ks, QXp)
        else: oX = pv(win, "X", pX, VA)
        onorm(win, 1, o1)
        pa0 = proj_init(win, 0, CV[win][0][1])
        bar(f"Ba{win}", ST4 + [("O", 0), ("O", 1), ("H", 0), ("H", 1)] + OUT3 + (RGr + XTr(9, 16) + STB + [("O", 2)] if win == 0 else []))
        if win == 0:
            clk[0] = 0
            for r in range(9, 16): xrow(14 + r, r)
        proj_tile(win, 0, pa0)
        p2 = softmax(win, 2, s2)
        o2 = pv(win, 2, p2, VA)
        pa1 = proj_init(win, 1, CV[win][1][1])
        proj_tile(win, 1, pa1)
        onorm(win, 2, o2)
        if win == 3:
            onorm(win, "X", oX)
            P.tag = "xaddr"
            xa = ra.q(); axrd, astx, e1_, e2_ = xa[0], xa[1], xa[2], xa[3]
            P.s("s_lshl_b32", sT3[0], sW, 8)
            P.v("v_subrev_u32", axrd, sT3[0], aXW128)
            P.v("v_subrev_u32", e1_, HB, aRD)
            P.v("v_bfe_u32", e2_, e1_, 4, 4)
            P.v("v_cmp_gt_u32", "vcc", 4, e2_)
            P.v("v_mul_u32_u24", e2_, 7 * 86016, e2_)
            P.v("v_lshrrev_b32", e1_, 8, e1_)
            P.v("v_lshl_add_u32", e1_, e1_, 3, e2_)
            P.s("s_mul_i32", sTMP, sCOL, 7 * 384)
            P.s("s_add_u32", sTMP, sTMP, sWOFF)
            P.s("s_add_u32", sTMP, sTMP, 6 * 86016)
            P.v("v_add_u32", e1_, sTMP, e1_)
            P.v("v_bfrev_b32", e2_, 2)
            P.v("v_cndmask_b32", astx, e2_, e1_, "vcc")
        pa2 = proj_init(win, 2, CV[win][2][1])
        if nxt is not None and CFG["kb"]: kstep(nxt, CFG["kb"])
        bar(f"Bb{win}", [("O", 2), ("OX",)] + OUT3[:eo] + (XTr(0, 9) if win == 0 else []) + (XTr(9, 16) if win == 1 else []))
        proj_tile(win, 2, pa2)
        out_rows(win, range(0, 2 * eo))
        if win < 3:
            pX = softmax(win, "X", sX); oX = pv(win, "X", pX, VA); onorm(win, "X", oX)
            convK(n2, nxt, CFG["ki"])
    pa = proj_init(3, "X", None)
    proj_tile(3, "X", pa, axrd, astx)
    bar("Bz", OUT3[eo:])
    out_rows(3, range(2 * eo, 7))
    return P, ra, nfixed

def emit(path, mode="idx", stamps=False, trace=None, **kw):
    sched.SYNC_DIST[0] = CFG['sdist']
    P, ra, nfixed = gen(stamps)
    head = []
    late = [(set(V(4 * k, 4).regs()), [4 * k]) for k in range(5)] + [(set(convA.regs()), [convA.i + 4 * k for k in range(9)])]
    skw = {k: CFG[k] for k in ("kahead", "window", "merge", "reserve", "vm_gap", "l2lat", "inflight", "st_gap", "w_gap", "w_wt", "mslack", "ldsq", "ldslat", "fslack", "vwin", "kscan", "bw", "tagoff", "tstall", "hbmlat", "dmaf", "dmaw") if k in CFG}
    lines, st, marks = schedule5(P.ins, list(range(20, NPOOL, 4)), late, ra.octs, nfixed=nfixed, t0=250, trace=trace, **skw)
    print("sim", st, marks)
    cnt = {}
    for i in P.ins:
        for x in flat(i): cnt[x.kind] = cnt.get(x.kind, 0) + 1
    print(cnt)
    if stamps:
        FS = list(range(3, 16)) + [47, 50, 51] + list(range(93, 102))
        nl = []; k = 0
        def stamp(k):
            return ["    s_memtime s[82:83]", "    s_waitcnt lgkmcnt(0)", f"    s_sub_u32 s{FS[k]}, s82, s78"]
        for l in lines:
            if ("s_barrier" in l or "L_back" in l) and stamps != 2:
                nl.append(l); nl += stamp(k); k += 1
            else: nl.append(l)
        nl += stamp(k)
        nl += ["    s_waitcnt vmcnt(0)"] + stamp(k + 1)
        nl += ["    s_memrealtime s[82:83]", "    s_waitcnt lgkmcnt(0)", "    v_mov_b32 v1, 0"]
        nl += [f"    v_writelane_b32 v1, s{FS[j]}, {j}" for j in range(k + 2)]
        nl += ["    v_writelane_b32 v1, s80, 62", "    v_writelane_b32 v1, s82, 63",
               "    s_mov_b32 s74, 0x10000000", "    s_mov_b32 s75, 0x20000",
               "    v_mbcnt_lo_u32_b32 v0, -1, 0", "    v_mbcnt_hi_u32_b32 v0, -1, v0", "    v_lshlrev_b32 v0, 2, v0",
               "    s_lshl_b32 s82, s2, 2", "    s_add_u32 s82, s82, s36", "    s_lshl_b32 s82, s82, 8",
               "    buffer_store_dword v1, v0, s[72:75], s82 offen"]
        lines = nl
    slow = []
    import re
    for l in lines:
        m = re.search(r"; poll (\d+)$", l)
        if m:
            k = m.group(1)
            cmp_ = [x for x in lines if "v_cmp_gt_u32" in x and f"; chk {k} " in x][0]
            slow += [f"L_slow{k}:", l.split(";")[0].rstrip(), "    s_waitcnt lgkmcnt(0)", cmp_.split(";")[0].rstrip(),
                     f"    s_cbranch_vccnz L_slow{k}", f"    s_branch L_back{k}"]
    lines = [l.replace("s_getpc_b64 s[88:89]", "s_getpc_b64 s[88:89]\nL_pc:").replace("CODE_REMAIN", "L_end-L_pc") for l in lines]
    src = open("cdna_kernels/" + NAME + ".s.ref").read().split("\n")
    hdr = [l for l in src if l.startswith(";") and "@launch" not in l]
    txt = "\n".join(hdr) + f"\n; @launch grid=(256,1,1) block=(256,1,1) lds={LDS_TOTAL}\n"
    txt += f""".amdgcn_target "amdgcn-amd-amdhsa--gfx950"
.text
.globl {NAME}_kernel
.p2align 8
.type {NAME}_kernel,@function
{NAME}_kernel:
""" + "\n".join(head) + "\n" + "\n".join(lines) + f"""
L_end:
    s_endpgm
""" + "\n".join(slow) + f"""
.section .rodata,"a"
.p2align 6
.amdhsa_kernel {NAME}_kernel
  .amdhsa_next_free_vgpr 512
  .amdhsa_next_free_sgpr 102
  .amdhsa_accum_offset 256
  .amdhsa_group_segment_fixed_size 0
  .amdhsa_kernarg_size 56
  .amdhsa_user_sgpr_count 2
  .amdhsa_user_sgpr_kernarg_segment_ptr 1
  .amdhsa_system_sgpr_workgroup_id_x 1
.end_amdhsa_kernel
"""
    open(path, "w").write(txt)

if __name__ == "__main__":
    import argparse
    ap = argparse.ArgumentParser()
    ap.add_argument("-o", default="cdna_kernels/" + NAME + ".s")
    ap.add_argument("--mode", default="idx")
    ap.add_argument("--stamps", type=int, default=0)
    ap.add_argument("--trace", default="")
    ap.add_argument("--cfg", default="")
    ap.add_argument("--json", default="")
    a = ap.parse_args()
    if a.json:
        import json; CFG.update(json.load(open(a.json)))
    for kv in a.cfg.split(","):
        if kv:
            k, v = kv.split("="); CFG[k] = int(v) if v.lstrip("-").isdigit() else (float(v) if v.replace(".","").isdigit() else v)
    tr = [] if a.trace else None
    emit(a.o, a.mode, a.stamps, tr)
    if a.trace:
        open(a.trace, "w").write("\n".join(f"{t} {tag:12s} {txt}" for t, txt, tag in tr))
```

```python
import re, bisect
from sched import *
import sched
from sched2 import hazard_need, wait_need

class PI:
    __slots__ = ("txt", "kind", "rd", "wr", "res_rd", "res_wr", "srcc", "ab", "data", "tag")

QRE = re.compile(r"\bq\[(\d+):(\d+)\]|\bq(\d+)\b")

def vq_of(i):
    s = set()
    for x in flat(i):
        for r in x.rd | x.wr:
            if r[0] == "q": s.add(int(r[1:]) >> 2)
    return s

def schedule5(ins, pool, late_pool=None, octs=(), vm_gap=66, merge=120, t0=480, inflight=11.5, kahead=12, window=400,
              reserve=0, l2lat=700, nfixed=0, st_gap=130, w_gap=80, w_wt=1.5, mslack=10, ldsq=120, ldslat=75, dmaf=1.1, dmaw=1.3, accres=1, fslack=0, tagoff=None, vwin=400, kscan=60, bw=0.25, tstall=2200, hbmlat=1500, chainp=0, dmac=4, trace=None):
    build_dag(ins)
    n = len(ins)
    vqs = [vq_of(i) for i in ins]
    octs = set(octs)
    mate = {}
    for a in octs: mate[a] = a + 1; mate[a + 1] = a
    for k in range(n):
        vqs[k] = vqs[k] | {mate[v] for v in vqs[k] if v in mate}
    users = {}
    for i in ins:
        for v in vqs[i.idx]: users.setdefault(v, []).append(i.idx)
    remaining = {v: len(u) for v, u in users.items()}
    phys = {}
    free = [(-1000 + k, b) for k, b in enumerate(pool)]
    fclock = [0]
    late_left = [[set(i.idx for i in ins if (i.rd | i.wr) & rs), qs] for rs, qs in (late_pool or [])]
    isM = [(not i.sub) and i.kind in ("mfma", "smf") for i in ins]
    isVM = [any(x.kind in ("vld", "vst", "dma") for x in flat(i)) for i in ins]
    isDS = [any(x.kind in ("dsr", "dsw") for x in flat(i)) for i in ins]
    isW = [any(x.kind == "dsw" for x in flat(i)) for i in ins]
    vdst = [any(r[0] == 'q' for r in i.wr) for i in ins]
    urgent = [i.tag.startswith(('wtr', 'wload', 'dma', 'fin', 'arr', 'poll', 'chk')) for i in ins]
    lastM = None; vec_free = 0; lds_free = 0; ds_done = 0; dw_free = 0; valu_end = -100; last_kind = ""
    feed = {}
    for i in ins:
        if i.kind == "dsr":
            c = [s_ for (s_, l) in i.succs if isM[s_] and (ins[s_].ab & i.wr)]
            if c: feed[i.idx] = min(c)
    unM = [i.idx for i in ins if isM[i.idx]]
    unI = list(range(n))
    for i in ins:
        i.prio = i.idx - i.bias + (tagoff.get(i.tag, 0) if tagoff else 0)
        i.npred = len(i.preds); i.rt = 0
    unM.sort(key=lambda k: (ins[k].prio, k))
    issued = [None] * n
    gate = [-1] * n
    for i in ins:
        gte = -1
        for p in i.preds:
            gte = max(gte, p if (ins[p].kind == "bar" or ins[p].tag.startswith("chk")) else gate[p])
        gate[i.idx] = gte
    avail = [i for i in ins if i.npred == 0]
    st = dict(t=t0, pos=0, idle=0, nop=0, wait=0, minfree=99)
    lines = []; hist = []; lg = []; vm = []; marks = []
    mf_free = 0; vm_free = 0; vmq = []
    def mapname(r, tmp):
        if r[0] != "q": return r
        k = int(r[1:]); b = phys.get(k >> 2, tmp.get(k >> 2))
        return f"v{b + (k & 3)}"
    def conv(x, tmp):
        p = PI()
        def sub(m):
            if m.group(3) is not None:
                return mapname("q" + m.group(3), tmp)
            a, b = int(m.group(1)), int(m.group(2))
            base = phys.get(a >> 2, tmp.get(a >> 2))
            return f"v[{base + (a & 3)}:{base + (a & 3) + b - a}]"
        p.txt = QRE.sub(sub, x.txt); p.kind = x.kind; p.tag = x.tag
        p.rd = {mapname(r, tmp) for r in x.rd}; p.wr = {mapname(r, tmp) for r in x.wr}
        p.res_rd = x.res_rd; p.res_wr = x.res_wr
        p.srcc = tuple(mapname(r, tmp) for r in x.srcc); p.ab = {mapname(r, tmp) for r in x.ab}
        p.data = {mapname(r, tmp) for r in x.data}
        return p
    def tentative(i):
        need = sorted(v for v in vqs[i.idx] if v not in phys)
        if not need: return {}
        fd = {b: tm for tm, b in free}
        out = {}
        for v in need:
            if v in octs:
                c = [(max(fd[b], fd[b + 4]), b) for b in fd if b % 8 == 0 and b + 4 in fd]
                if not c: c = [(max(fd[b], fd[b + 4]), b) for b in fd if b + 4 in fd]
                if not c: return None
                b = min(c)[1]; out[v] = b; out[v + 1] = b + 4; del fd[b]; del fd[b + 4]
        for v in need:
            if v in mate: continue
            if not fd: return None
            recent = fclock[0] - 2
            c = [((b ^ 4) in fd and oct_soon[0], tm > recent, tm, b) for b, tm in fd.items()]
            b = min(c, key=lambda x: (x[0], x[1], x[2]))[3]; out[v] = b; del fd[b]
        return out
    oct_soon = [True]
    def emit_wait(nl, nv):
        nonlocal lg, vm
        t = st["t"]; w = []
        if nv is not None:
            while nv > 0 and vm[len(vm) - nv][1] + 400 <= t: nv -= 1
            nv = min(nv, 63); w.append(f"vmcnt({nv})"); vm = vm[len(vm) - nv:] if nv else []
        if nl is not None:
            while nl > 0 and lg[len(lg) - nl][1] + mslack <= t: nl -= 1
            nl = min(nl, 15); w.append(f"lgkmcnt({nl})"); lg = lg[len(lg) - nl:] if nl else []
        lines.append("    s_waitcnt " + " ".join(w))
        if trace is not None: trace.append((t, "wait " + " ".join(w), ""))
        st["pos"] += 1; st["t"] += 4; st["wait"] += 1
    def dma_busy(t): return any(a > t and a < t + 300 and w >= 1 for a, w in vmq[-16:])
    def vm_block():
        t = st["t"]
        pend = sorted([x for x in vmq if x[0] > t])
        tot = sum(w for _, w in pend); e = t
        for a, w in pend:
            if tot <= inflight: break
            tot -= w; e = a
        return e
    slowtag = [i.tag.startswith(('wload', 'wtr', 'dma')) for i in ins]
    peak_cache = {}
    def peaks(upto):
        if peak_cache.get("v") is not None and peak_cache["upto"] >= upto: return peak_cache["v"]
        cur = 0; pk = 0; seen = set(); rem = {}
        out = {}
        for idx in unI:
            if idx > upto: break
            out[idx] = pk
            for v in vqs[idx]:
                if v not in phys and v not in seen:
                    seen.add(v); cur += 1
            pk = max(pk, cur)
            if slowtag[idx]: continue
            for v in vqs[idx]:
                r = rem.get(v, remaining[v]) - 1; rem[v] = r
                if r == 0: cur -= 1
        peak_cache["v"] = out; peak_cache["upto"] = upto
        return out
    def can_alloc(i):
        need = sum(1 for v in vqs[i.idx] if v not in phys)
        if need == 0: return True
        if need > len(free): return False
        if tentative(i) is None: return False
        if i.idx == unI[0] or i.idx == base_idx: return True
        pk = peaks(maxidx)[i.idx]
        return len(free) - need >= pk + (reserve if pk else 0)
    while avail:
        t = st["t"]
        vb = None
        base_idx = None
        for idx in unI:
            if not isVM[idx] and ins[idx].kind != "salu" and not ins[idx].tag.startswith("wtr"):
                base_idx = idx; break
        if base_idx is None: base_idx = unI[0]
        lim = base_idx + window
        cand = [i for i in avail if i.prio <= lim or (i.prio <= base_idx + vwin and all(v in phys for v in vqs[i.idx]))]
        if not cand: cand = [min(avail, key=lambda i: i.idx)]
        if unI[0] < nfixed: cand = [ins[unI[0]]]; vb = 0
        maxidx = max(i.idx for i in cand)
        def eff(i):
            nonlocal vb
            e = i.rt
            if isM[i.idx]: e = max(e, mf_free)
            if isVM[i.idx]:
                if vb is None: vb = vm_block()
                e = max(e, vm_free, vb)
            if isDS[i.idx] and len(lg) >= 14: e = max(e, lg[0][1] + mslack)
            if isDS[i.idx]: e = max(e, lds_free - ldsq)
            if isDS[i.idx]: e = max(e, dw_free)
            return e
        rank = {}
        def mk_rank():
            k = 0; blocked = set()
            for m in unM[:kscan]:
                gte = gate[m]
                blk = gte >= 0 and (issued[gte] is None)
                if not blk:
                    for p in ins[m].preds:
                        if issued[p] is None and (ins[p].kind in VALU_KINDS or p in blocked): blk = True; break
                rank[m] = k
                if blk: blocked.add(m); k += bw
                else: k += 1
        def near(i):
            if not rank: mk_rank()
            return rank.get(feed[i.idx], 999) <= kahead
        ok = []
        for i in cand:
            if i.idx in feed and vdst[i.idx] and not near(i): continue
            if can_alloc(i): ok.append(i)
        if not ok:
            ok = [i for i in cand if can_alloc(i)]
        if not ok:
            o_ = min(avail, key=lambda i: i.idx)
            maxidx = max(maxidx, o_.idx)
            assert can_alloc(o_), ("register deadlock", o_.txt, free)
            ok = [o_]
        rdy = [i for i in ok if eff(i) <= t]
        afterM = last_kind in ("mfma", "smf")
        msoon = any(isM[i.idx] and i.rt <= t + 24 for i in ok)
        vpen = t < valu_end + 8
        def key(i):
            mem = isDS[i.idx] or isVM[i.idx]
            if mem:
                if vpen: c = 3 if msoon else (0 if (urgent[i.idx] or i.idx in feed) else 1)
                elif isW[i.idx]: c = -1 if afterM or not msoon else 2
                elif urgent[i.idx]: c = -3
                elif i.idx in feed: c = -2
                else: c = -0.5
            elif i.kind == "salu" and msoon and t >= vec_free: c = 2.5
            elif urgent[i.idx]: c = 0
            else: c = 1
            return (c, i.prio, i.idx)
        def hz(i): return hazard_need(hist, st["pos"], conv(flat(i)[0], tentative(i)))
        pick = None
        if t < vec_free:
            ndone = 0
            for (o, dn) in lg:
                if dn + fslack <= t: ndone += 1
                else: break
            useful = any(o.kind == "dsr" for (o, dn) in lg[:ndone])
            nvd = 0
            for (o, dn) in vm:
                if dn + 100 <= t: nvd += 1
                else: break
            usefulv = nvd > 0 and vm[nvd - 1][0].tag.startswith("wload")
            if useful or usefulv:
                emit_wait(len(lg) - ndone if useful else None, len(vm) - nvd if usefulv else None); st["fw"] = st.get("fw", 0) + 1
                continue
            sc = sorted([i for i in rdy if i.kind == "salu" or (i.kind == "bar" and wait_need(lg, vm, conv(i, {})) == (None, None))], key=key)
            sc = [i for i in sc if hz(i) == 0]
            if sc: pick = sc[0]
            else:
                st["t"] = vec_free; continue
        def mkey(i):
            ch = chainp and lastM is not None and lastM in i.preds and i.preds[lastM] == 16
            return (0 if ch else 1,) + key(i)
        for i in sorted([i for i in rdy if isM[i.idx]], key=mkey) if pick is None else []:
            if hz(i) == 0: pick = i; break
        if pick is None:
            if mf_free > t and not (afterM and any(isDS[i.idx] or isVM[i.idx] for i in rdy)):
                nxt = sorted([i for i in ok if isM[i.idx] and i.rt <= mf_free], key=mkey)
                if nxt and (nxt[0].rt <= t + 4 or mkey(nxt[0])[0] == 0):
                    nl, nv = wait_need(lg, vm, conv(nxt[0], tentative(nxt[0])))
                    if nl is not None or nv is not None:
                        emit_wait(nl, nv); continue
            for i in sorted([i for i in rdy if not isM[i.idx]], key=key):
                if hz(i) == 0: pick = i; break
        if pick is None:
            fut = [eff(i) for i in ok if eff(i) > t]
            nt = min(fut) if fut else None
            if rdy and not (nt is not None and nt - t <= 8):
                pick = min(rdy, key=lambda i: (hz(i), key(i)))
            else:
                st["idle"] += nt - t
                if trace is not None: trace.append((t, f"<<< idle {nt-t}", ""))
                st["t"] = nt; continue
        avail.remove(pick)
        tmp = tentative(pick)
        assert tmp is not None, ("out of registers", pick.txt, pick.tag)
        for v, b in tmp.items():
            phys[v] = b; free = [f for f in free if f[1] != b]
        st["minfree"] = min(st["minfree"], len(free))
        tissue = None; pick_arr = 0
        for x0 in flat(pick):
            x = conv(x0, {})
            if x.kind in ("dsr", "dsw") and len(lg) >= 15: emit_wait(13, None)
            nl, nv = wait_need(lg, vm, x)
            if nl is not None or nv is not None: emit_wait(nl, nv)
            hn = hazard_need(hist, st["pos"], x)
            if hn:
                lines.append(f"    s_nop {hn-1}")
                if trace is not None: trace.append((st["t"], f"nop {hn}", ""))
                st["pos"] += hn; st["t"] += 4 * hn; st["nop"] += hn
            if x.kind in ("mfma", "smf") and st["t"] < mf_free: st["t"] = mf_free
            if x.kind not in ("salu", "bar", "smem") and st["t"] < vec_free: st["t"] = vec_free
            if x.kind in ("dsr", "dsw", "vld", "vst", "dma") and st["t"] < valu_end + 8:
                st["vpen"] = st.get("vpen", 0) + valu_end + 8 - st["t"]; st["t"] = valu_end + 8
            if x.kind in ("dsr", "dsw") and st["t"] < dw_free: st["t"] = dw_free
            if tissue is None: tissue = st["t"]
            lines.append("    " + x.txt + (f"    ; {x.tag}" if x.tag else ""))
            if trace is not None: trace.append((st["t"], x.txt + f"   [free {len(free)}]", x.tag))
            hist.append((x, st["pos"])); st["pos"] += 1
            if x.kind in ("dsr", "dsw"):
                occ = (16 if "b128" in x.txt else 8) * (2 if x.kind == "dsw" else 1)
                if dma_busy(st["t"]): occ = int(occ * dmaf)
                lds_free = max(lds_free, st["t"]) + occ
                ds_done = lds_free + ldslat
                lg.append((x, ds_done))
            if x.kind in ("vld", "vst", "dma"):
                arr = max(pick.arrive, st["t"] + (hbmlat if (x.tag.startswith("dma") and st["t"] > 2000) else l2lat))
                arr = max([arr] + [a for _, a in vm[-1:]])
                vm.append((x, arr))
                big = "x4" in x.txt
                isw = x.tag.startswith("wload")
                vm_free = st["t"] + (st_gap if x.kind == "vst" else w_gap if isw else vm_gap if big else 32)
                if x.kind != "vst": vmq.append((arr, (w_wt if isw else 1.0) if big else (1.4 if x.tag.startswith("dma touch") else 0.2)))
                pick_arr = arr
            if x.kind in ("mfma", "smf"):
                mf_free = st["t"] + 16; vec_free = st["t"] + COST[x.kind]
            if x.kind == "bar" or "cbranch_vcc" in x.txt: marks.append((st["t"], x.tag))
            if x.kind == "dsw":
                big = "b128" in x.txt
                kf = dmaw if dma_busy(st["t"]) else 1
                sm_ = "b32" in x.txt or "b16" in x.txt
                dw_free = st["t"] + int((54 if big else 16 if sm_ else 30) * kf)
                st["t"] += int((21 if big else 8 if sm_ else 13) * kf)
            elif x.kind == "vst": st["t"] += (21 if "x4" in x.txt else 13) + dmac - 4
            elif x.kind == "dma" and "global" not in x.txt: st["t"] += dmac
            elif x.kind in ("mfma", "smf", "bar"): st["t"] += 4
            else: st["t"] += COST[x.kind]
            if x.kind not in ("salu", "bar"): last_kind = x.kind
            if x.kind in VALU_KINDS: valu_end = st["t"]
            if x.tag.endswith("STALL"): st["t"] = max(st["t"], tstall)
        issued[pick.idx] = tissue
        unI.remove(pick.idx)
        if isM[pick.idx]:
            unM.remove(pick.idx)
            if lastM is not None and pick.preds.get(lastM) == 16: st["chain"] = st.get("chain", 0) + 1
            lastM = pick.idx
        for v in vqs[pick.idx]:
            remaining[v] -= 1
            if remaining[v] == 0:
                fclock[0] += 1; free.append((fclock[0], phys[v]))
        for ll in late_left:
            if ll[1] is None: continue
            ll[0].discard(pick.idx)
            if not ll[0]:
                for b in ll[1]:
                    fclock[0] += 1; free.append((fclock[0], b))
                ll[1] = None
        peak_cache["v"] = None
        for (s_, l) in pick.succs:
            c = ins[s_]
            if l == sched.LAT_VM: c.rt = max(c.rt, pick_arr)
            elif l in (sched.LAT_DS, 60) and isDS[pick.idx]: c.rt = max(c.rt, ds_done)
            else: c.rt = max(c.rt, tissue + l)
            c.npred -= 1
            if c.npred == 0: avail.append(c)
    return lines, st, marks
```

```python
import sys, math, struct
from sched import *
from sched5 import schedule5
import sched

NAME = "standalone__window_attn_davit__vision"
def f32bits(x): return struct.unpack("<I", struct.pack("<f", x))[0]

ROW = 3744; PIX = 416
XT = 0
SM = 59904
HX_OFF, OX_OFF, X0X_OFF = 0, 1536, 3072
HB = SM + 4608
H_OFF = [1024, 25600]; BC_OFF = 19456; ST_OFF = 23552; O_OFF = 44032
ST2D = O_OFF + 16384 - ST_OFF
RING = HB + 62464
NR = 3
OUTB = RING; OPX = 400
LDS_TOTAL = RING + 36864
SRB = HB + H_OFF[1]
LOC = {"R0": RING, "R1": RING + 12288, "R2": RING + 24576, "H": HB + H_OFF[1], "O": HB + O_OFF, "X0": XT + 9 * ROW, "X1": XT + 9 * ROW + 12288}
PATCH = HB + O_OFF
assert LDS_TOTAL <= 163840

def V(i, n=1): return R("v", i, n)
def A(i, n=1): return R("a", i, n)
def S(i, n=1): return R("s", i, n)

NPOOL = 136
p_ = [NPOOL]
def fix(n):
    r = V(p_[0], n); p_[0] += n; return r
convA = fix(36); WOV = fix(32); KX = fix(6); QX = fix(6); VB = fix(12); ONES = fix(6); IDENT = fix(2)
aCV = fix(6)
aCV1 = [aCV[k] for k in range(3)]; aCV2 = [aCV[3 + k] for k in range(3)]
aOW = [fix(1) for _ in range(3)]
aW128, aW64, aRD, aBCR, aSTW, aXW128, aXW64, voffX, aOR, voffO, SIDX = [fix(1) for _ in range(11)]
SPARE = p_[0]
assert SPARE <= 256, SPARE

class RA:
    def __init__(s): s.n = 0; s.octs = []
    def q(s):
        s.n += 1; return R("q", 4 * (s.n - 1), 4)
    def o(s):
        s.octs.append(s.n); s.n += 2; return R("q", 4 * (s.n - 2), 8)
    def p(s): return s.q()[0:2]
    def rel(s, *rs): pass

def wunit(sl, ks):
    base = (sl * 6 + ks) * 12
    return [A(base + 4 * ft, 4) if base + 4 * ft < 256 else WOV[base + 4 * ft - 256:base + 4 * ft - 252] for ft in range(3)]
SL_K, SL_V, SL_Q, SL_O = 0, 1, 2, 3
SL_COL = {SL_Q: 0, SL_K: 384, SL_V: 768}

srdX, srdDW, srdWQ, srdWO, srdOUT = S(16, 4), S(20, 4), S(24, 4), S(28, 4), S(32, 4)
sW, sXCD, sCOL, sROW, sM0, sTMP, sTMP2, sWOFF, sC, sINV, sEPS = [S(36 + i) for i in range(11)]
sM6 = S(48, 2)
sM1, sM2, sM3, sS7 = S(52, 2), S(54, 2), S(56, 2), S(58, 2)
sMX = [S(60 + 2 * i, 2) for i in range(4)]
sSO = [S(68 + i) for i in range(4)]
sT3 = S(76, 2)
sA, sB, sD, sE = S(84), S(85), S(86), S(87)
sPC = S(88, 2)
sRS, sGS, sRW = S(90), S(91), S(92)
sXR = S(85)
sWB, sOB = S(20, 2), S(22, 2)
sGB = [S(88, 2), S(0, 2)]

CFG = dict(xt0=2300, xdt=115, wdt=74, w0=-300, rf_at=24, hoist=3, xfirst=23, k0i=0, kb=1, ki=3, eo=2, bw=0.0, accres=0, kH=3, kO1=99, kO2=0, kX=8, gl=0, cl=3, cl0=2, chainp=1, b0=1, xf="nt", pf="nt", iv=0, fine3=0, su=1, tfirst=1, tstall=2400, soft=0, hard="B2/Bz", sdist=150, mix=0, split0=1, slots="R0/R1/R2/H/R0/R1/R2/R0/X0/X1/R1/R2/R0/X0/X1/R1/R2/R0/X0/X1/R1/R2/R0/X0", stflags="nt", w_gap=72, codepf=1, kahead=10, fslack=10, window=250)

def gen(stamps=False):
    P = Prog(); ra = RA()
    P.track_scc = True
    tid, lane, t_, g_ = V(0), V(1), V(2), V(3)
    tmp1, tmp2, tmp3, tmp4 = V(4), V(5), V(6), V(7)
    pixr, chr_, hi, vp = V(8), V(9), V(10), V(11)
    dA, dB, dC, cpd = V(12), V(13), V(14), V(15)
    tch, tch2, td1, td2 = V(16), V(17), V(18), V(19)
    H = P
    P.tag = "head"
    if stamps:
        H.raw("s_memtime s[78:79]", "smem", wr=["s78", "s79"]); H.raw("s_memrealtime s[80:81]", "smem", wr=["s80", "s81"])
    for k, o in ((16, 0), (20, 8), (24, 16), (28, 24), (32, 32)):
        H.raw(f"s_load_dwordx2 s[{k}:{k+1}], s[0:1], {o}", "smem", wr=[f"s{k}", f"s{k+1}"])
    if stamps: H.raw("s_load_dwordx2 s[72:73], s[0:1], 48", "smem", wr=["s72", "s73"])
    H.raw("s_cmp_ge_u32 s2, 256")
    H.raw("s_cbranch_scc1 L_end")
    clk = [CFG["xt0"]]
    H.s("s_lshr_b32", sCOL, S(2), 3, scc=True)
    if CFG["codepf"]:
        H.raw("s_getpc_b64 s[88:89]", wr=["s88", "s89"])
        H.v("v_lshrrev_b32", tmp1, 4, tid)
        H.v("v_lshlrev_b32", tmp1, 7, tmp1)
        H.v("v_lshl_add_u32", tmp1, sCOL, 11, tmp1)
        H.v("v_min_u32", tmp1, "CODE_REMAIN", tmp1)
        i = P.add(Ins(f"global_load_dword {cpd}, {tmp1}, s[88:89]", "vld", tmp1.regs() + ["s88", "s89"], cpd.regs(),
                      res_rd=("VM",), res_wr=("VM",)))
        i.arrive = clk[0]
    H.v("v_lshrrev_b32", tmp2, 6, tid)
    H.v("v_and_b32", lane, 63, tid)
    H.v("v_readfirstlane_b32", sW, tmp2)
    H.s("s_and_b32", sXCD, S(2), 7, scc=True)
    H.s("s_mov_b32", srdX[2], 19267584); H.s("s_mov_b32", srdX[3], "0x20000")
    H.s("s_mul_i32", sTMP, sW, 60)
    H.s("s_min_u32", sTMP, sTMP, 170, scc=True)
    H.s("s_mul_i32", sTMP2, sCOL, 7)
    H.s("s_sub_u32", sTMP2, sTMP2, 1, scc=True)
    H.v("v_add_u32", tmp3, sTMP, lane)
    H.v("v_mul_u32_u24", pixr, 2521, tmp3)
    H.v("v_lshrrev_b32", pixr, 16, pixr)
    H.v("v_mul_u32_u24", chr_, 26, pixr)
    H.v("v_sub_u32", chr_, tmp3, chr_)
    H.v("v_add_u32", tmp2, sTMP2, pixr)
    H.v("v_cmp_gt_u32", sT3, 24, chr_)
    H.v("v_cmp_gt_u32", "vcc", 224, tmp2)
    H.v("v_mul_u32_u24", tmp2, 384, tmp2)
    H.v("v_lshl_add_u32", tmp2, chr_, 4, tmp2)
    H.s("s_and_b64", "vcc", "vcc", sT3, scc=True)
    H.v("v_bfrev_b32", tmp4, 2)
    H.s("s_lshl_b32", sM0, sTMP, 4, scc=True)
    H.v("v_cndmask_b32", voffX, tmp4, tmp2, "vcc")
    H.s("s_mul_i32", sROW, sXCD, 28 * 86016)
    H.s("s_mov_b32", sGS, 86016)
    H.s("s_movk_i32", sRS, ROW)
    H.s("s_sub_u32", sSO[0], sROW, sGS, scc=True)
    H.s("s_cselect_b32", sSO[0], "0x40000000", sSO[0], rdscc=True)
    H.s("s_add_u32", sSO[1], sROW, 7 * 86016, scc=True)
    H.v("v_mul_u32_u24", tmp1, 43, lane)
    H.v("v_lshrrev_b32", tmp1, 8, tmp1)
    H.v("v_mul_u32_u24", tmp2, 384 - 96, tmp1)
    H.v("v_lshl_add_u32", dA, lane, 4, tmp2)
    H.s("s_movk_i32", srdDW[2], 3456); H.s("s_mov_b32", srdDW[3], srdX[3])
    H.s("s_mul_i32", sWOFF, sW, 96)
    H.s("s_lshl_b32", sD, sW, 10, scc=True)
    H.s("s_add_u32", sD, sD, HB + H_OFF[0], scc=True)
    H.s("s_mov_b32", "m0", sD)
    H.raw("s_waitcnt lgkmcnt(0)")
    P.tag = "dma dw"
    P.dma(dA, srdDW, sWOFF, [("DW",)]); P.ins[-1].arrive = clk[0]
    P.s("s_add_u32", "m0", sM0, 8 * ROW)
    P.raw("s_nop 0")
    P.track_scc = False
    def arr(dt):
        clk[0] += dt; P.ins[-1].arrive = clk[0]
    def rows0():
        for r in range(8, -1, -1):
            P.tag = f"dma r{r}"
            if r < 8:
                P.s("s_sub_u32", "m0", "m0", sRS)
                if r > 0: P.s("s_sub_u32", sSO[1], sSO[1], sGS)
                else: P.raw("s_nop 0")
            P.dma(voffX, srdX, sSO[1] if r else sSO[0], [("XT", r)], CFG["xf"]); arr(CFG["xdt"])
    def touches():
        P.tag = "dma touch"
        P.s("s_mov_b32", srdWQ[2], 221184); P.s("s_mov_b32", srdWQ[3], srdX[3])
        P.s("s_mov_b32", srdWO[2], 73728); P.s("s_mov_b32", srdWO[3], srdX[3])
        P.v("v_lshrrev_b32", tch, 2, tid)
        P.v("v_lshlrev_b32", tch, 7, tch)
        P.s("s_lshl_b32", sB, sCOL, 13)
        P.vld("buffer_load_dword", td1, tch, srdWQ, sB); arr(0)
        P.s("s_xor_b32", sB, sB, 31 << 13)
        P.vld("buffer_load_dword", td2, tch, srdWO, sB); arr(0)
    rows0()
    nfixed = len(P.ins)
    def patches():
        P.tag = "dma patch"
        P.v("v_mul_u32_u24", tmp1, 86, pixr)
        P.v("v_lshrrev_b32", tmp1, 8, tmp1)
        P.v("v_mul_u32_u24", tmp2, 3, tmp1)
        P.v("v_sub_u32", tmp2, pixr, tmp2)
        P.v("v_add_u32", tmp2, sTMP2, tmp2)
        P.v("v_cmp_le_i32", "vcc", 0, tmp2)
        P.v("v_mul_u32_u24", tmp1, 7 * 86016, tmp1)
        P.v("v_mul_u32_u24", tmp2, 384, tmp2)
        P.s("s_and_b64", "vcc", "vcc", sT3)
        P.v("v_lshl_add_u32", tmp2, chr_, 4, tmp2)
        P.v("v_add_u32", tmp2, tmp2, tmp1)
        P.v("v_cndmask_b32", vp, tmp4, tmp2, "vcc")
        for r in range(3):
            if r == 0:
                P.s("s_add_u32", "m0", sM0, PATCH); P.s("s_add_u32", sSO[1], sROW, 12 * 86016)
            else:
                P.s("s_add_u32", "m0", "m0", sRS); P.s("s_add_u32", sSO[1], sSO[1], sGS)
            P.dma(vp, srdX, sSO[1], [("PATCH",)], CFG["pf"]); arr(CFG["xdt"])
    if CFG['tfirst']: touches(); patches()
    else: patches(); touches()
    P.tag = "dw"
    P.v("v_and_b32", t_, 15, lane)
    P.v("v_lshrrev_b32", g_, 4, lane)
    P.v("v_lshrrev_b32", hi, 5, lane)
    P.v("v_lshl_add_u32", dA, t_, 1, sD)
    P.v("v_add_u32", dB, g_, hi)
    P.v("v_mul_u32_u24", dB, 96, dB)
    P.v("v_add_u32", dB, dB, dA)
    P.v("v_lshlrev_b32", dC, 2, g_)
    P.s("s_mov_b32", sE, "0x8276")
    P.v("v_bfe_u32", dC, sE, dC, 4)
    P.v("v_mul_u32_u24", dC, 96, dC)
    P.v("v_add_u32", dC, dC, dA)
    def cA(ct, p): return convA[(ct * 3 + p) * 4:(ct * 3 + p) * 4 + 4]
    for p in range(3):
        for ct in range(3):
            P.dsr("ds_read_u16", cA(ct, p)[3], (dA, dB, dC)[p], (5 * 96 if p == 0 else 0) + 32 * ct, res=[("DW",)])

    so_i = [1]
    def nso():
        so_i[0] = (so_i[0] + 1) % 4
        return sSO[so_i[0]]
    def xrow(r, slot, dt=None):
        P.tag = f"dma r{r}"
        so = nso()
        P.s("s_add_u32", "m0", sM0, XT + slot * ROW)
        P.s("s_add_u32", so, sROW, (r - 1) * 86016)
        P.dma(voffX, srdX, so, [("XT", slot)], CFG["xf"]); arr(CFG["xdt"] if dt is None else dt)
    P.tag = "addr"
    e1 = ra.q(); e2 = ra.q(); pxq = ra.q(); aPW, aPR = pxq[0], pxq[1]
    shv, u_, yv, xv = e1[0], e1[1], e1[2], e1[3]
    cvb, oc, h1, h2 = e2[0], e2[1], e2[2], e2[3]
    P.v("v_and_b32", tmp1, 16, lane)
    P.v("v_add_u32", cvb, sWOFF, tmp1)
    P.v("v_add_u32", u_, 4, t_)
    P.v("v_bfe_u32", oc, u_, 3, 1)
    P.v("v_and_b32", xv, 7, u_)
    P.v("v_mul_u32_u24", h1, PIX, hi)
    P.v("v_mul_u32_u24", h2, 2 * ROW, hi)
    P.s("s_mov_b32", sS7[0], "0x08080808"); P.s("s_mov_b32", sS7[1], sS7[0])
    P.v("v_add_u32", tmp2, 1, oc)
    P.v("v_cndmask_b32", xv, xv, tmp2, sS7)
    P.v("v_cndmask_b32", yv, oc, 6, sS7)
    P.v("v_mad_u32_u24", tmp3, yv, 9, xv)
    P.v("v_mul_u32_u24", tmp3, PIX, tmp3)
    P.v("v_add3_u32", aCV1[0], tmp3, cvb, h1)
    P.v("v_add3_u32", aCV2[0], tmp3, cvb, h2)
    P.v("v_cndmask_b32", tmp3, 18, 2, sS7)
    P.v("v_mul_u32_u24", tmp3, PIX, tmp3)
    for j in (1, 2):
        P.v("v_add_u32", aCV1[j], aCV1[j - 1], tmp3); P.v("v_add_u32", aCV2[j], aCV2[j - 1], tmp3)
    P.v("v_and_b32", tmp1, 3, lane)
    P.v("v_mul_u32_u24", SIDX, "0x5555", tmp1)
    P.v("v_lshlrev_b32", shv, 4, lane)
    P.v("v_and_b32", shv, 16, shv)
    P.tag = "convA"
    P.begin_bundle()
    P.raw("s_mov_b32 exec_hi, 0")
    for ct in range(3): P.v("v_mov_b32", cA(ct, 0)[3], "0x3f80", rmw=True)
    P.raw("s_mov_b32 exec_hi, -1")
    P.end_bundle()
    for ct in range(3): P.v("v_lshlrev_b32", cA(ct, 0)[3], shv, cA(ct, 0)[3])
    for (ps, m0_, sh) in (((0,), "0x03000003", 2), ((1, 2), "0x000f000f", 4)):
        for j in range(4):
            if j == 0:
                P.raw(f"s_mov_b32 vcc_lo, {m0_}", wr=["vcc"]); P.raw("s_mov_b32 vcc_hi, vcc_lo", rd=["vcc"], wr=["vcc"])
            else: P.raw(f"s_lshl_b64 vcc, vcc, {sh}", rd=["vcc"], wr=["vcc"])
            for p in ps:
                for ct in range(3): P.v("v_cndmask_b32", cA(ct, p)[j], 0, cA(ct, p)[3], "vcc")

    P.tag = "addr"
    wo4 = ra.q(); wo4b = ra.q(); sr2 = ra.q(); aSR, aSRb, aXRD = sr2[0], sr2[1], sr2[2]; cxq = ra.q(); aCX1, aCX2 = cxq[0], cxq[1]
    for j in range(3):
        P.v("v_add_u32", tmp2, 64 * j, lane)
        P.v("v_mul_u32_u24", tmp3, 43691, tmp2)
        P.v("v_lshrrev_b32", tmp3, 18, tmp3)
        P.v("v_mul_u32_u24", tmp4, 6, tmp3)
        P.v("v_sub_u32", tmp2, tmp2, tmp4)
        P.v("v_lshlrev_b32", tmp2, 4, tmp2)
        if j: P.v("v_subrev_u32", tmp2, 1024 * j, tmp2)
        if j == 1: P.v("v_cmp_lt_u32", "vcc", 15, tmp3)
        for w4, stride in ((wo4, 1152), (wo4b, 384)):
            P.v("v_mul_u32_u24", tmp4, stride, tmp3)
            P.v("v_add_u32", w4[j], tmp2, tmp4)
            if j == 1:
                P.v("v_add_u32", tmp4, 32 * stride, w4[1])
                P.v("v_cndmask_b32", w4[3], w4[1], tmp4, "vcc")
    P.s("s_mul_i32", sRW, sW, 3072)
    P.v("v_lshrrev_b32", tmp2, 2, lane)
    P.v("v_mul_u32_u24", tmp2, 96, tmp2)
    P.v("v_and_b32", tmp3, 3, lane)
    P.v("v_lshl_add_u32", tmp2, tmp3, 3, tmp2)
    P.v("v_add_u32", aSR, sRW, tmp2)
    P.v("v_add_u32", aSRb, SRB, aSR)
    gb_i = [0]
    if CFG["gl"]:
        for d_, s_ in ((sWB, srdWQ), (sOB, srdWO)):
            P.begin_bundle()
            P.s("s_add_u32", d_[0], s_[0], sWOFF); P.s("s_addc_u32", d_[1], s_[1], 0)
            P.end_bundle(); P.ins[-1].kind = "salu"
    def wdma(sl, ks, slot):
        P.tag = f"wload{sl}.{ks}"
        stride = 384 if sl == SL_O else 1152
        srd = srdWO if sl == SL_O else srdWQ
        col = 0 if sl == SL_O else SL_COL[sl]
        w4 = wo4b if sl == SL_O else wo4
        row0 = 48 * ks if ks < 4 else 96 * (ks - 4) + 32
        P.s("s_add_u32", "m0", sRW, LOC[slot])
        if CFG["gl"]:
            def nb(off):
                gb_i[0] ^= 1; sb_ = sGB[gb_i[0]]
                P.begin_bundle()
                P.s("s_add_u32", sb_[0], (sWB if sl != SL_O else sOB)[0], off)
                P.s("s_addc_u32", sb_[1], (sWB if sl != SL_O else sOB)[1], 0)
                P.end_bundle(); P.ins[-1].kind = "salu"
                return sb_
            sb_ = nb(col + row0 * stride)
            for j in range(3):
                if ks >= 4 and j == 2: sb_ = nb(col + (row0 + 32) * stride)
                vo = w4[3] if (ks >= 4 and j == 1) else w4[j]
                P.add(Ins(f"global_load_lds_dwordx4 {vo}, {sb_}" + (f" offset:{1024 * j}" if j else ""), "dma",
                          vo.regs() + sb_.regs() + ["m0"], (), res_rd=("VM",), res_wr=(("RG", slot), "VM"))); arr(CFG["wdt"])
            return slot
        so = nso(); P.s("s_add_u32", so, sWOFF, col + row0 * stride)
        for j in range(3):
            if ks >= 4 and j == 2:
                so = nso(); P.s("s_add_u32", so, sWOFF, col + (row0 + 32) * stride)
            vo = w4[3] if (ks >= 4 and j == 1) else w4[j]
            P.dma(vo, srd, so, [("RG", slot)], "", off=1024 * j); arr(CFG["wdt"])
        return slot
    def wtr(sl, ks, slot):
        P.tag = f"wtr{sl}.{ks}"
        u = wunit(sl, ks)
        for ft in range(3):
            for hb in range(2):
                P.dsr("ds_read_b64_tr_b16", u[ft][2 * hb:2 * hb + 2], aSR if slot[0] == "X" else aSRb,
                      LOC[slot] - (0 if slot[0] == "X" else SRB) + hb * 1536 + 32 * ft, res=[("RG", slot)])
    units = [(sl, ks) for sl in (SL_K, SL_Q, SL_V, SL_O) for ks in range(6)]
    SLOTS = []; lru = {}
    for k in range(24):
        av = ["R0", "R1", "R2"] + (["H"] if k <= CFG["kH"] else []) + (["O"] if CFG["kO1"] <= k <= CFG["kO2"] else []) + (["X0", "X1"] if k >= CFG["kX"] else [])
        s_ = min(av, key=lambda x: lru.get(x, -1)); lru[s_] = k; SLOTS.append(s_)
    assert len(SLOTS) == 24
    wstate = dict(d=0, t=0)
    def wstep(upto_dma, upto_tr=0):
        while wstate["d"] < upto_dma:
            n_ = wstate["d"]
            prev = [k for k in range(n_) if SLOTS[k] == SLOTS[n_]]
            if prev:
                while wstate["t"] <= prev[-1]:
                    wtr(*units[wstate["t"]], SLOTS[wstate["t"]]); wstate["t"] += 1
            wdma(*units[n_], SLOTS[n_]); wstate["d"] += 1
        while wstate["t"] < upto_tr:
            wtr(*units[wstate["t"]], SLOTS[wstate["t"]]); wstate["t"] += 1
    for r in range(9, 16):
        xrow(r, r)
        if CFG["mix"] and (r - 9) % CFG["mix"] == CFG["mix"] - 1:
            c0 = clk[0]; wstep(wstate["d"] + 1); clk[0] = c0 + 60
    clk[0] += CFG["w0"]
    firstO = SLOTS.index("O") if "O" in SLOTS else 99; firstX = min(SLOTS.index("X0"), SLOTS.index("X1"))
    lastHO = max(k for k in range(24) if SLOTS[k] in ("H", "O"))
    assert lastHO < firstX
    wstep(min(firstO, firstX))
    def late_setup():
        P.tag = "addr"
        for m, val in ((sM1, 0x22222222), (sM2, 0x44444444), (sM3, 0x88888888)):
            P.s("s_mov_b32", m[0], hex(val)); P.s("s_mov_b32", m[1], m[0])
        for k in range(4): P.v("v_mov_b32", ONES[k], "0x3f803f80" if k == 0 else ONES[0])
        P.v("v_lshlrev_b32", tmp1, 4, lane)
        P.v("v_add_u32", aRD, HB, tmp1)
        P.s("s_lshl_b32", sTMP, sW, 10)
        P.v("v_add_u32", aW128, sTMP, aRD)
        P.s("s_add_u32", sT3[1], sTMP, HB + BC_OFF)
        P.v("v_lshl_add_u32", aBCR, t_, 4, sT3[1])
        P.s("s_lshr_b32", sTMP, sW, 1)
        P.s("s_and_b32", sTMP2, sW, 1)
        P.s("s_lshl_b32", sTMP2, sTMP2, 3)
        P.s("s_lshl_b32", sT3[0], sTMP, 10)
        P.s("s_add_u32", sT3[0], sT3[0], sTMP2)
        P.s("s_add_u32", sA, sT3[0], HB + ST_OFF)
        P.v("v_lshl_add_u32", tmp2, t_, 4, sA)
        P.v("v_lshrrev_b32", tmp3, 2, t_)
        P.v("v_cmp_eq_u32", "vcc", tmp3, g_)
        P.v("v_add_u32", tmp3, 8, aBCR)
        P.v("v_cndmask_b32", aSTW, tmp3, tmp2, "vcc")
        P.s("s_add_u32", sT3[0], sT3[0], 4096)
        P.v("v_add_u32", aW64, sT3[0], aRD)
        P.s("s_mov_b32", sINV, hex(f32bits(1.0 / 192)))
        P.s("s_mov_b32", sEPS, hex(f32bits(1e-5)))
        P.v("v_and_b32", tmp1, 3, lane)
        P.v("v_mul_u32_u24", tmp3, 3 * PIX, tmp1)
        P.v("v_add_u32", tmp3, PATCH - 3 * PIX, tmp3)
        P.v("v_mov_b32", tmp4, XT + 6 * ROW)
        P.v("v_cmp_eq_u32", "vcc", 0, tmp1)
        P.v("v_cndmask_b32", tmp3, tmp3, tmp4, "vcc")
        P.v("v_add3_u32", aCX1, tmp3, cvb, h1)
        P.v("v_add3_u32", aCX2, tmp3, cvb, h2)
        P.v("v_lshl_add_u32", tmp2, g_, 2, tmp1)
        P.v("v_lshlrev_b32", tmp2, 4, tmp2)
        P.v("v_add_u32", aXRD, SM, tmp2)
        P.s("s_lshl_b32", sT3[0], sW, 8)
        P.v("v_add_u32", aXW128, sT3[0], aXRD)
        P.s("s_add_u32", sTMP, sTMP, 4)
        P.s("s_lshl_b32", sT3[0], sTMP, 8)
        P.s("s_add_u32", sT3[0], sT3[0], sTMP2)
        P.v("v_add_u32", aXW64, sT3[0], aXRD)
    def late_setup2():
        P.tag = "addr"
        P.s("s_mov_b32", srdOUT[2], 19267584); P.s("s_mov_b32", srdOUT[3], "0x20000")
        P.s("s_mov_b32", sC, hex(f32bits(48 ** -0.5 * math.log2(math.e))))
        for k in range(4):
            P.s("s_mov_b32", sMX[k][0], hex(0x11111111 << k)); P.s("s_mov_b32", sMX[k][1], hex(0x11111111 << k))
        P.v("v_cmp_gt_u32", "vcc", 16, lane)
        P.v("v_cndmask_b32", ONES[4], 0, ONES[0], "vcc")
        P.v("v_mov_b32", ONES[5], ONES[4])
        P.v("v_mov_b32", tmp3, "0x3f80")
        P.v("v_lshlrev_b32", tmp3, shv, tmp3)
        P.raw("s_mov_b32 vcc_lo, 0x00300003", wr=["vcc"]); P.raw("s_mov_b32 vcc_hi, 0x30000300", rd=["vcc"], wr=["vcc"])
        P.v("v_cndmask_b32", IDENT[0], 0, tmp3, "vcc")
        P.raw("s_lshl_b64 vcc, vcc, 2", rd=["vcc"], wr=["vcc"])
        P.v("v_cndmask_b32", IDENT[1], 0, tmp3, "vcc")
        P.s("s_add_u32", sTMP, sWOFF, OUTB)
        P.v("v_lshl_add_u32", tmp1, g_, 3, sTMP)
        P.v("v_mad_u32_u24", tmp3, yv, 7, xv)
        P.v("v_mul_u32_u24", tmp3, OPX, tmp3)
        P.v("v_add_u32", aOW[0], tmp3, tmp1)
        P.v("v_cndmask_b32", tmp3, 14, 2, sS7)
        P.v("v_mul_u32_u24", tmp3, OPX, tmp3)
        for j in (1, 2): P.v("v_add_u32", aOW[j], aOW[j - 1], tmp3)
        P.s("s_mul_i32", sTMP, sW, 40)
        P.v("v_add_u32", tmp1, sTMP, lane)
        P.v("v_min_u32", tmp2, 167, tmp1)
        P.v("v_mul_u32_u24", tmp3, 2731, tmp2)
        P.v("v_lshrrev_b32", tmp3, 16, tmp3)
        P.v("v_add_u32", tmp3, tmp3, tmp2)
        P.v("v_lshlrev_b32", tmp3, 4, tmp3)
        P.v("v_add_u32", aOR, OUTB, tmp3)
        P.s("s_mul_i32", sTMP2, sCOL, 7 * 384)
        P.v("v_lshl_add_u32", tmp2, tmp1, 4, sTMP2)
        P.s("s_add_u32", sTMP, sW, 1)
        P.s("s_and_b32", sTMP, sTMP, 4)
        P.s("s_lshl_b32", sTMP, sTMP, 1)
        P.s("s_add_u32", sTMP, sTMP, 40)
        P.v("v_bfrev_b32", tmp4, 2)
        P.v("v_cmp_gt_u32", "vcc", sTMP, lane)
        P.v("v_cndmask_b32", voffO, tmp4, tmp2, "vcc")
        P.v("v_cmp_lt_u32", sM6, 23, tmp1)

    PAIR_OFF = [0, ROW, ROW + PIX, 2 * ROW, 2 * PIX]

    def pack3(acc, pd=None):
        a, b, c = acc
        P.v("v_cvt_pk_bf16_f32", a[0], a[0], a[1]); P.v("v_cvt_pk_bf16_f32", a[1], a[2], a[3])
        P.v("v_cvt_pk_bf16_f32", a[2], b[0], b[1]); P.v("v_cvt_pk_bf16_f32", a[3], b[2], b[3])
        if pd is None: pd = c[0:2]
        P.v("v_cvt_pk_bf16_f32", pd[0], c[0], c[1]); P.v("v_cvt_pk_bf16_f32", pd[1], c[2], c[3])
        return a, pd

    def conv_tile(win, tt, stat_tile, xp=None):
        sb = 1 if win in (1, 'X') else 0
        P.tag = f"conv{win}.{tt}"
        acc = [ra.q() for _ in range(3)]
        if win == "X":
            a1, a2, base = aCX1, aCX2, 0
            res = [("XT", r) for r in (6, 7, 8)] + [("PATCH",)]
        else:
            a1, a2, base = aCV1[tt], aCV2[tt], (win & 1) * 7 * ROW
            r0 = (win & 1) * 7
            res = [("XT", r0 + r) for r in sorted(set(list(range(2 * tt, 2 * tt + 4)) + [6, 7, 8]))]
        for ct in range(3):
            f = ra.q()
            P.dsr("ds_read_b128", f, a1, base + PAIR_OFF[2] + 32 * ct, res=res)
            P.mfma32(acc[ct], cA(ct, 0), f, 0)
        for sp, (pa, pb) in enumerate(((0, 1), (3, 4))):
            for ct in range(3):
                f = ra.o()
                P.dsr("ds_read_b128", f[0:4], a1, base + PAIR_OFF[pa] + 32 * ct, res=res)
                P.dsr("ds_read_b128", f[4:8], a2 if pb == 4 else a1, base + PAIR_OFF[pb] + 32 * ct, res=res)
                P.smf(acc[ct], cA(ct, 1 + sp), f, SIDX)
        P.tag = f"stat{win}.{tt}"
        xq = ra.q()
        if xp is None: xp = ra.p()
        for k in range(4): P.v("v_cvt_pk_bf16_f32", xq[k], acc[k >> 1][2 * (k & 1)], acc[k >> 1][2 * (k & 1) + 1])
        for k in range(2): P.v("v_cvt_pk_bf16_f32", xp[k], acc[2][2 * k], acc[2][2 * k + 1])
        if win == "X":
            P.dsw("ds_write_b128", aXW128, xq, X0X_OFF, res=[("X0X",)])
            P.dsw("ds_write_b64", aXW64, xp, X0X_OFF, res=[("X0X",)])
        sm, gr = ra.q(), ra.q()
        P.mfma32(gr, xq, xq, 0)
        P.mfma32(sm, ONES[0:4], xq, 0)
        P.mfma16(gr, xp, xp, gr)
        P.mfma16(sm, ONES[0:2], xp, sm)
        ra.rel(xq, xp)
        P.v("v_cndmask_b32", gr[0], gr[0], gr[1], sM1)
        P.v("v_cndmask_b32", gr[0], gr[0], gr[2], sM2)
        P.v("v_cndmask_b32", sm[1], gr[0], gr[3], sM3)
        P.dsw("ds_write_b64", aSTW, sm[0:2], sb * ST2D + 256 * stat_tile, res=[("ST", stat_tile + 4 * sb)])
        return acc, (xq, xp)

    def norm_head(win, ntiles):
        P.tag = f"fin{win}"
        a, b = ra.q(), ra.q()
        sb = 1 if win == 1 else 0
        sres = [("ST", k + 4 * sb) for k in range(ntiles)]
        P.dsr("ds_read_b128", a, aRD, ST_OFF + sb * ST2D, res=sres)
        P.dsr("ds_read_b128", b, aRD, ST_OFF + sb * ST2D + 1024, res=sres)
        P.v("v_add_f32", a[0], a[0], a[2]); P.v("v_add_f32", a[1], a[1], a[3])
        P.v("v_add_f32", b[0], b[0], b[2]); P.v("v_add_f32", b[1], b[1], b[3])
        P.v("v_add_f32", a[0], a[0], b[0]); P.v("v_add_f32", a[1], a[1], b[1])
        P.v("v_mul_f32", a[2], sINV, a[0])
        P.v("v_mul_f32", a[1], sINV, a[1])
        P.v("v_fma_f32", a[1], ("-%s", a[2]), a[2], a[1])
        P.v("v_max_f32", a[1], 0, a[1])
        P.v("v_add_f32", a[1], sEPS, a[1])
        P.v("v_rsq_f32", a[0], a[1])
        P.v("v_mul_f32", a[1], ("-%s", a[2]), a[0])
        P.dsw("ds_write_b64", aW128, a[0:2], BC_OFF, res=[("BC",)])
        prs = [b[0:2], b[2:4], a[2:4], a[0:2]]
        for k in range(ntiles): P.dsr("ds_read_b64", prs[k], aBCR, 256 * k, res=[("BC",)])
        if ntiles < 4: ra.rel(prs[3])
        return prs
    def norm_tile(kind, tt, acc, pr):
        P.tag = f"norm{kind}.{tt}"
        for q in range(12): P.v("v_fma_f32", acc[q >> 2][q & 3], acc[q >> 2][q & 3], pr[0], pr[1])
        ra.rel(pr)
        hq, hp = pack3(acc)
        if kind == "X":
            P.dsw("ds_write_b128", aXW128, hq, HX_OFF, res=[("HX",)])
            P.dsw("ds_write_b64", aXW64, hp, HX_OFF, res=[("HX",)])
        else:
            o = H_OFF[kind & 1] + tt * 6144
            P.dsw("ds_write_b128", aW128, hq, o, res=[("H", kind & 1)])
            P.dsw("ds_write_b64", aW64, hp, o, res=[("H", kind & 1)])
        ra.rel(hq, hp)

    def hfrag(f, win, tt, ks):
        if tt == "X": P.dsr("ds_read_b128", f, aXRD, HX_OFF + 256 * ks, res=[("HX",)])
        else: P.dsr("ds_read_b128", f, aRD, H_OFF[win & 1] + tt * 6144 + 1024 * ks, res=[("H", win & 1)])

    def gemm(win, tt, parts, fr, VA, pd=None):
        P.tag = f"{parts}{win}.{tt}"
        accs = {p: [ra.q() for _ in range(3)] for p in parts}
        out = {}
        def fin(p, dt):
            d = accs[p][dt]
            if p == "V":
                if tt == 0:
                    VA.append(d); dst = d[0:2]
                elif tt == 1: dst = VA[dt][2:4]
                elif tt == 2: dst = VB[4 * dt:4 * dt + 2]
                else: dst = VB[4 * dt + 2:4 * dt + 4]
            elif tt == "X": dst = (KX if p == "K" else QX)[2 * dt:2 * dt + 2]
            elif dt < 2: dst = accs[p][0][2 * dt:2 * dt + 2]
            else:
                dst = pd if pd is not None else d[0:2]
                out[p] = (accs[p][0], dst); out["hi"] = d[2:4]
            P.v("v_cvt_pk_bf16_f32", dst[0], d[0], d[1]); P.v("v_cvt_pk_bf16_f32", dst[1], d[2], d[3])
        cl = CFG["cl"] if not (win == 0) else CFG["cl0"]
        for k0 in range(0, 6, cl):
            fs = {}
            for p in parts:
                for dt in range(3):
                    for ks in range(k0, k0 + cl):
                        if ks not in fs:
                            fs[ks] = ra.q(); hfrag(fs[ks], win, tt, ks)
                        f = fs[ks]
                        w = wunit({"K": SL_K, "V": SL_V, "Q": SL_Q}[p], ks)
                        d = accs[p][dt]
                        if p == "V": P.mfma32(d, f, w[dt], d if ks else 0)
                        else: P.mfma32(d, w[dt], f, d if ks else 0)
                    if k0 + cl == 6 and cl > 1: fin(p, dt)
        if cl == 1:
            for p in parts:
                for dt in range(3): fin(p, dt)
        return out

    def scores(win, qt, Ks, qp):
        P.tag = f"S{win}.{qt}"
        s = [ra.q() for _ in range(4)]
        for kt in range(4): P.mfma32(s[kt], Ks[kt][0], qp[0], 0)
        for kt in range(4): P.mfma16(s[kt], Ks[kt][1], qp[1], s[kt])
        if qt != "X": ra.rel(*qp)
        return s
    def softmax(win, qt, s):
        P.tag = f"sm{win}.{qt}"
        sx = s[3][win]
        fre = [s[3][k] for k in range(4) if k != win]
        m, t2 = fre[0], fre[1]
        vals = [s[k >> 2][k & 3] for k in range(12)] + [sx]
        P.v("v_max3_f32", m, vals[0], vals[1], vals[12])
        P.v("v_max3_f32", t2, vals[2], vals[3], vals[4])
        P.v("v_max3_f32", m, m, vals[5], vals[6])
        P.v("v_max3_f32", t2, t2, vals[7], vals[8])
        P.v("v_max3_f32", m, m, vals[9], vals[10])
        P.v("v_max3_f32", m, m, t2, vals[11])
        P.v("v_mov_b32", t2, m)
        P.swap("v_permlane32_swap_b32", m, t2)
        P.v("v_max_f32", m, m, t2)
        P.v("v_mov_b32", t2, m)
        P.swap("v_permlane16_swap_b32", m, t2)
        P.v("v_max_f32", m, m, t2)
        P.v("v_mul_f32", m, sC, m)
        for x in vals:
            P.v("v_fma_f32", x, x, sC, ("-%s", m))
        for x in vals: P.v("v_exp_f32", x, x)
        a, b, c = s[0], s[1], s[2]
        P.v("v_cvt_pk_bf16_f32", a[0], a[0], a[1]); P.v("v_cvt_pk_bf16_f32", a[1], a[2], a[3])
        P.v("v_cvt_pk_bf16_f32", a[2], b[0], b[1]); P.v("v_cvt_pk_bf16_f32", a[3], b[2], b[3])
        P.v("v_cvt_pk_bf16_f32", c[0], c[0], c[1]); P.v("v_cvt_pk_bf16_f32", c[1], c[2], c[3])
        if win & 1: P.v("v_cvt_pk_bf16_f32", c[2 + (win >> 1)], 0, sx)
        else: P.v("v_cvt_pk_bf16_f32", c[2 + (win >> 1)], sx, 0)
        P.v("v_mov_b32", c[3 - (win >> 1)], 0)
        ra.rel(b, s[3])
        return a, c
    def scoresX(win, Ks):
        P.tag = f"S{win}.X"
        s = [ra.q() for _ in range(4)]
        for kt in range(4): P.mfma32(s[kt], QX[0:4], Ks[kt][0], 0)
        for kt in range(4): P.mfma16(s[kt], QX[4:6], Ks[kt][1], s[kt])
        P.tag = f"sm{win}.X"
        z = s[3][win]
        P.raw("s_mov_b32 vcc_lo, 0", wr=["vcc"]); P.raw(f"s_mov_b32 vcc_hi, {hex(1 << (16 + win))}", rd=["vcc"], wr=["vcc"])
        mi = s[3][(win + 1) & 3]
        P.v("v_mov_b32", mi, "0xff800000")
        P.v("v_cndmask_b32", z, mi, z, "vcc")
        for kt in range(3):
            P.v("v_mov_b32_dpp", z, s[kt][win], rmw=True, mods=f"quad_perm:[0,1,2,3] row_mask:{hex(1 << kt)} bank_mask:0xf")
        return s[3]
    def softmaxX(win, sq):
        P.tag = f"sm{win}.X"
        z = sq[win]; m = sq[(win + 1) & 3]
        P.v("v_mul_f32", z, sC, z)
        def red(op):
            P.v(op + "_dpp", m, z, z, mods="row_ror:8 row_mask:0xf bank_mask:0xf")
            for k in (4, 2, 1): P.v(op + "_dpp", m, m, m, mods=f"row_ror:{k} row_mask:0xf bank_mask:0xf")
            P.v(op + "_dpp", m, m, m, mods="row_bcast:15 row_mask:0xa bank_mask:0xf")
            P.v(op + "_dpp", m, m, m, mods="row_bcast:31 row_mask:0xc bank_mask:0xf")
            P.v("v_readlane_b32", sXR, m, 63)
        red("v_max_f32")
        P.v("v_subrev_f32", z, sXR, z)
        P.v("v_exp_f32", z, z)
        red("v_add_f32")
        P.v("v_rcp_f32", m, sXR)
        P.v("v_mul_f32", z, z, m)
        P.v("v_cvt_pk_bf16_f32", z, z, z)
        if win == 0:
            l16, tq = pxq[2], pxq[3]
            P.s("s_lshl_b32", sTMP, sW, 8)
            P.s("s_add_u32", sTMP, sTMP, HB)
            P.v("v_subrev_u32", l16, HB, aRD, extra_rd=z.regs())
            P.v("v_lshrrev_b32", tq, 8, l16)
            P.v("v_lshl_add_u32", aPR, tq, 4, sTMP)
            P.v("v_lshrrev_b32", tq, 9, l16)
            P.v("v_lshl_add_u32", aPW, tq, 6, sTMP)
            P.v("v_bfe_u32", tq, l16, 6, 2)
            P.v("v_lshl_add_u32", aPW, tq, 4, aPW)
            P.v("v_bfe_u32", tq, l16, 8, 1)
            P.v("v_lshl_add_u32", aPW, tq, 3, aPW)
            P.v("v_bfe_u32", tq, l16, 4, 2)
            P.v("v_lshl_add_u32", aPW, tq, 1, aPW)
        P.dsw("ds_write_b16", aPW, z, 0, res=[("PX",)])
        pa, pb = ra.q(), ra.q()
        P.dsr("ds_read_b128", pa, aPR, 0, res=[("PX",)])
        P.dsr("ds_read_b128", pb, aPR, 64, res=[("PX",)])
        return pa, pb
    def pvX(win, pp, VA):
        P.tag = f"PV{win}.X"
        pa, pb = pp
        oa = [ra.q() for _ in range(3)]
        for dt in range(3): P.mfma32(oa[dt], VA[dt], pa, 0)
        for dt in range(3): P.mfma32(oa[dt], VB[4 * dt:4 * dt + 4], pb, oa[dt])
        return oa, None
    def pv(win, qt, pp, VA):
        P.tag = f"PV{win}.{qt}"
        pa, pb = pp
        oa = [ra.q() for _ in range(3)]; ls = ra.q()
        P.mfma32(ls, ONES[0:4], pa, 0)
        for dt in range(3): P.mfma32(oa[dt], VA[dt], pa, 0)
        P.mfma32(ls, ONES[2:6], pb, ls)
        for dt in range(3): P.mfma32(oa[dt], VB[4 * dt:4 * dt + 4], pb, oa[dt])
        ra.rel(pa, pb)
        return oa, ls
    def onorm(win, qt, ol):
        P.tag = f"on{win}.{qt}"
        oa, ls = ol
        if ls is not None:
            P.v("v_rcp_f32", ls[0], ls[0])
            for q in range(12): P.v("v_mul_f32", oa[q >> 2][q & 3], oa[q >> 2][q & 3], ls[0])
        ra.rel(ls)
        oq, op = pack3(oa)
        if qt == "X":
            P.begin_bundle()
            P.s("s_mov_b64", "exec", sMX[win])
            P.dsw("ds_write_b128", aXW128, oq, OX_OFF, res=[("OX",)])
            P.dsw("ds_write_b64", aXW64, op, OX_OFF, res=[("OX",)])
            P.s("s_mov_b64", "exec", -1)
            P.end_bundle()
        else:
            o = O_OFF + qt * 6144
            P.dsw("ds_write_b128", aW128, oq, o, res=[("O", qt)])
            P.dsw("ds_write_b64", aW64, op, o, res=[("O", qt)])
        ra.rel(oq, op)

    def proj_init(win, tt, x0):
        P.tag = f"proj{win}.{tt}"
        if tt == "X":
            xq, xp = ra.q(), ra.p()
            P.dsr("ds_read_b128", xq, aXW128, X0X_OFF, res=[("X0X",)])
            P.dsr("ds_read_b64", xp, aXW64, X0X_OFF, res=[("X0X",)])
        else: xq, xp = x0
        acc = [ra.q() for _ in range(3)]
        bit = 12 if tt == "X" else win * 3 + tt
        for ct, x in enumerate((xq[0:2], xq[2:4], xp)):
            if (CFG["iv"] >> bit) & 1:
                for k in range(2):
                    P.v("v_lshlrev_b32", acc[ct][2 * k], 16, x[k])
                    P.v("v_and_b32", acc[ct][2 * k + 1], "0xffff0000", x[k])
            else: P.mfma16(acc[ct], IDENT, x, 0)
        return acc
    def proj_tile(win, tt, acc, axrd=None, astx=None):
        P.tag = f"proj{win}.{tt}"
        cl = CFG["cl"]
        for k0 in range(0, 6, cl):
            fs = {}
            for ct in range(3):
                for ks in range(k0, k0 + cl):
                    if ks not in fs:
                        f = fs[ks] = ra.q()
                        if tt == "X": P.dsr("ds_read_b128", f, axrd, OX_OFF + 256 * ks, res=[("OX",)])
                        else: P.dsr("ds_read_b128", f, aRD, O_OFF + tt * 6144 + 1024 * ks, res=[("O", tt)])
                    P.mfma32(acc[ct], wunit(SL_O, ks)[ct], fs[ks], acc[ct])
        for ct in range(3):
            d = acc[ct]
            P.v("v_cvt_pk_bf16_f32", d[0], d[0], d[1]); P.v("v_cvt_pk_bf16_f32", d[1], d[2], d[3])
            if tt == "X": P.vst("buffer_store_dwordx2", d[0:2], astx, srdOUT, sROW, 32 * ct, CFG["stflags"])
            else: P.dsw("ds_write_b64", aOW[tt], d[0:2], 32 * ct, res=[("OUT", tt)])
    def out_rows(win, rows):
        for r in rows:
            P.tag = f"out{win}.{r >> 1}"
            f = ra.q()
            P.dsr("ds_read_b128", f, aOR, r * 7 * OPX, res=[("OUT", r >> 1)] if r < 6 else [("OUT", k) for k in range(3)])
            so = nso(); P.s("s_add_u32", so, sROW, (win * 7 + r) * 86016)
            if r == 6:
                P.begin_bundle(); P.s("s_mov_b64", "exec", sM6)
            P.vst("buffer_store_dwordx4", f, voffO, srdOUT, so, 0, CFG["stflags"])
            if r == 6:
                P.s("s_mov_b64", "exec", -1); P.end_bundle()

    nsync = [0]
    def bar(tag, res):
        if tag in ("B0", "B1") or tag in CFG["hard"].split("/") or not CFG["soft"]:
            P.tag = tag; P.bar(res); return
        nsync[0] += 1; k = nsync[0]
        q = ra.q()
        res = list(res)
        P.tag = f"arr {tag}"
        P.v("v_mov_b32", q[0], k)
        i = P.dsw("ds_write_b32", aXW128, q[0], 4608, res=res + [("SY", k), ("FL",)]); i.res_rd |= set(res)
        P.tag = f"poll {k}"
        P.dsr("ds_read_b32", q[1], aRD, 0, res=[("SY", k)])
        P.tag = f"chk {k} {tag}"
        P.begin_bundle()
        P.v("v_cmp_gt_u32", "vcc", k, q[1])
        P.raw(f"s_cbranch_vccnz L_slow{k}\nL_back{k}:", "salu", rd=[], res_rd=res, res_wr=res)
        P.end_bundle()
    XTr = lambda a, b: [("XT", r) for r in range(a, b)]
    RGr = [("RG", k) for k in LOC]
    fr = None

    def conv3(win):
        pq = ra.q()
        return [lambda: conv_tile(win, 0, 0, pq[0:2]), lambda: conv_tile(win, 1, 1, pq[2:4]), lambda: conv_tile(win, 2, 2)]
    ST3 = [("ST", k) for k in range(3)]; ST4 = ST3 + [("ST", 3)]
    b0 = CFG["b0"]
    bar("B0", XTr(0, 9) if b0 == 1 else XTr(4, 9))
    CV = {}; KK = {}
    late_setup()
    assert not CFG["soft"]
    c0 = conv3(0); CV[0] = [None] * 3
    CV[0][2] = c0[2]()
    if b0 == 2: bar("B0b", XTr(0, 4))
    if b0 == 3: bar("B0b", XTr(2, 4))
    CV[0][1] = c0[1]()
    if b0 == 3: bar("B0c", XTr(0, 2))
    CV[0][0] = c0[0]()
    STB = [("ST", 4 + k) for k in range(4)]
    su = CFG["su"]
    bar("B1", ST3 + [("PATCH",), ("FL",), ("DW",), ("H", 0)] + (XTr(9, 16) if su == 0 else []))
    prs = norm_head(0, 3)
    cvx = conv_tile("X", 0, 3)
    cf = conv3(1); CV[1] = []
    for tt in range(3):
        norm_tile(0, tt, CV[0][tt][0], prs[tt])
        if su == 0: CV[1].append(cf[tt]())
    late_setup2()
    if su == 1: bar("B2", [("H", 0), ("PATCH",), ("RG", "O")] + XTr(9, 16))
    wstep(firstX, max(lastHO + 1, 6))
    O3 = [("O", k) for k in range(3)]; OUT3 = [("OUT", k) for k in range(3)]
    KXp, QXp = (KX[0:4], KX[4:6]), (QX[0:4], QX[4:6])
    def kstep(w, upto):
        kk = KK.setdefault(w, [])
        while len(kk) < upto:
            n_ = len(kk)
            kk.append(gemm(w, n_, "K", fr, None, kk[0]["hi"] if n_ == 1 else None))
    def convK(cw, kw, kpre):
        cf = conv3(cw) if cw is not None else None
        if cw is not None: CV[cw] = []
        for tt in range(3):
            if cw is not None: CV[cw].append(cf[tt]())
            if kw is not None and tt < kpre: kstep(kw, tt + 1)
    eo = CFG["eo"]
    if su == 1: convK(1, 0, CFG["k0i"])
    for win in range(4):
        nxt = win + 1 if win < 3 else None
        prv = win - 1 if win else None
        n2 = win + 2 if (win + 2 < 4) else None
        VA = []
        bar(f"Bs{win}", ST4 + O3 + OUT3[eo:] + (XTr(0, 16) + [("RG", k) for k in ("H", "O", "X0", "X1")] + ([("H", 0)] if su == 0 else []) + [("H", 1), ("PATCH",)] + STB if win == 0 else []))
        if win == 0:
            wstep(CFG["rf_at"])
            for r in range(9): xrow(14 + r, r, dt=90)
            wstep(24, 24)
        if nxt is not None: prs = norm_head(nxt, 4 if win == 0 else 3)
        if win == 0:
            norm_tile("X", 0, cvx[0], prs[3])
            bar("Bhx", [("HX",)])
        kstep(win, 3)
        kk = KK[win]; Ks = [kk[0]["K"], kk[1]["K"], kk[2]["K"], KXp]; qpd = kk[2]["hi"]
        if nxt is not None: norm_tile(nxt, 0, CV[nxt][0][0], prs[0])
        if win == 0:
            if nxt is not None: norm_tile(nxt, 1, CV[nxt][1][0], prs[1])
            gemm(0, "X", "KQ", fr, VA)
        if win == 3 and CFG["fine3"]:
            def xaddr():
                P.tag = "xaddr"
                xa = ra.q(); axrd, astx, e1_, e2_ = xa[0], xa[1], xa[2], xa[3]
                P.s("s_lshl_b32", sT3[0], sW, 8)
                P.v("v_subrev_u32", axrd, sT3[0], aXW128)
                P.v("v_subrev_u32", e1_, HB, aRD)
                P.v("v_bfe_u32", e2_, e1_, 4, 4)
                P.v("v_cmp_gt_u32", "vcc", 4, e2_)
                P.v("v_mul_u32_u24", e2_, 7 * 86016, e2_)
                P.v("v_lshrrev_b32", e1_, 8, e1_)
                P.v("v_lshl_add_u32", e1_, e1_, 3, e2_)
                P.s("s_mul_i32", sTMP, sCOL, 7 * 384)
                P.s("s_add_u32", sTMP, sTMP, sWOFF)
                P.s("s_add_u32", sTMP, sTMP, 6 * 86016)
                P.v("v_add_u32", e1_, sTMP, e1_)
                P.v("v_bfrev_b32", e2_, 2)
                P.v("v_cndmask_b32", astx, e2_, e1_, "vcc")
                return axrd, astx
            axrd, astx = xaddr()
            sX = scoresX(win, Ks)
            q0 = gemm(win, 0, "QV", fr, VA, qpd)["Q"]
            pX = softmaxX(win, sX)
            out_rows(prv, range(2 * eo, 7))
            s0 = scores(win, 0, Ks, q0)
            if CFG["fine3"] == 1:
                gemm(win, 1, "V", fr, VA); gemm(win, 2, "V", fr, VA)
                p0 = softmax(win, 0, s0)
                q1 = gemm(win, 1, "Q", fr, VA, qpd)["Q"]
            else:
                q1 = gemm(win, 1, "QV", fr, VA, qpd)["Q"]
                gemm(win, 2, "V", fr, VA)
                p0 = softmax(win, 0, s0)
            s1 = scores(win, 1, Ks, q1)
            oX = pvX(win, pX, VA); o0 = pv(win, 0, p0, VA)
            q2 = gemm(win, 2, "Q", fr, VA, qpd)["Q"]
            onorm(win, "X", oX); onorm(win, 0, o0)
            pa0 = proj_init(win, 0, CV[win][0][1]); paX = proj_init(3, "X", None)
            bar("Ba3", [("O", 0), ("OX",)] + OUT3)
            s2 = scores(win, 2, Ks, q2)
            proj_tile(win, 0, pa0)
            p1 = softmax(win, 1, s1)
            o1 = pv(win, 1, p1, VA)
            proj_tile(3, "X", paX, axrd, astx)
            onorm(win, 1, o1)
            pa1 = proj_init(win, 1, CV[win][1][1])
            bar("Bb3", [("O", 1), ("OUT", 0)])
            proj_tile(win, 1, pa1)
            p2 = softmax(win, 2, s2)
            out_rows(win, range(0, 2))
            onorm(win, 2, pv(win, 2, p2, VA))
            pa2 = proj_init(win, 2, CV[win][2][1])
            bar("Bc3", [("O", 2), ("OUT", 1)])
            proj_tile(win, 2, pa2)
            out_rows(win, range(2, 4))
            bar("Bz", [("OUT", 2)])
            out_rows(win, range(4, 7))
            return P, ra, nfixed
        if win == 0 and CFG['split0']:
            q0 = gemm(win, 0, "Q", fr, VA, qpd)["Q"]
            norm_tile(nxt, 2, CV[nxt][2][0], prs[2])
            s0 = scores(win, 0, Ks, q0)
            q1 = gemm(win, 1, "Q", fr, VA, qpd)["Q"]
            gemm(win, 0, "V", fr, VA)
            p0 = softmax(win, 0, s0)
            s1 = scores(win, 1, Ks, q1)
            gemm(win, 1, "V", fr, VA)
            q2 = gemm(win, 2, "QV", fr, VA, qpd)["Q"]
        else:
            if win == 3: sX = scoresX(win, Ks)
            q0 = gemm(win, 0, "QV", fr, VA, qpd)["Q"]
            if win == 3: pX = softmaxX(win, sX)
            if prv is not None: out_rows(prv, range(2 * eo, 4))
            if nxt is not None and win: norm_tile(nxt, 1, CV[nxt][1][0], prs[1])
            if prv is not None: out_rows(prv, range(4, 7))
            if nxt is not None: norm_tile(nxt, 2, CV[nxt][2][0], prs[2])
            s0 = scores(win, 0, Ks, q0)
            q1 = gemm(win, 1, "QV", fr, VA, qpd)["Q"]
            p0 = softmax(win, 0, s0)
            s1 = scores(win, 1, Ks, q1)
            q2 = gemm(win, 2, "QV", fr, VA, qpd)["Q"]
        if win == 0:
            gemm(0, "X", "V", fr, VA)
            P.tag = "vx"
            P.v("v_cmp_gt_u32", "vcc", HB + 256, aRD)
            for dt in range(3):
                for k in range(2):
                    r = VB[4 * dt + 2 + k]; P.v("v_cndmask_b32", r, 0, r, "vcc")
        p1 = softmax(win, 1, s1)
        o0 = pv(win, 0, p0, VA)
        s2 = scores(win, 2, Ks, q2)
        onorm(win, 0, o0)
        o1 = pv(win, 1, p1, VA)
        if win < 3: sX = scoresX(win, Ks)
        else: oX = pvX(win, pX, VA)
        onorm(win, 1, o1)
        pa0 = proj_init(win, 0, CV[win][0][1])
        bar(f"Ba{win}", ST4 + [("O", 0), ("O", 1), ("H", 0), ("H", 1)] + OUT3 + (RGr + XTr(9, 16) + STB + [("O", 2)] if win == 0 else []))
        if win == 0:
            clk[0] = 0
            for r in range(9, 16): xrow(14 + r, r)
        proj_tile(win, 0, pa0)
        p2 = softmax(win, 2, s2)
        o2 = pv(win, 2, p2, VA)
        pa1 = proj_init(win, 1, CV[win][1][1])
        proj_tile(win, 1, pa1)
        onorm(win, 2, o2)
        if win == 3:
            onorm(win, "X", oX)
            P.tag = "xaddr"
            xa = ra.q(); axrd, astx, e1_, e2_ = xa[0], xa[1], xa[2], xa[3]
            P.s("s_lshl_b32", sT3[0], sW, 8)
            P.v("v_subrev_u32", axrd, sT3[0], aXW128)
            P.v("v_subrev_u32", e1_, HB, aRD)
            P.v("v_bfe_u32", e2_, e1_, 4, 4)
            P.v("v_cmp_gt_u32", "vcc", 4, e2_)
            P.v("v_mul_u32_u24", e2_, 7 * 86016, e2_)
            P.v("v_lshrrev_b32", e1_, 8, e1_)
            P.v("v_lshl_add_u32", e1_, e1_, 3, e2_)
            P.s("s_mul_i32", sTMP, sCOL, 7 * 384)
            P.s("s_add_u32", sTMP, sTMP, sWOFF)
            P.s("s_add_u32", sTMP, sTMP, 6 * 86016)
            P.v("v_add_u32", e1_, sTMP, e1_)
            P.v("v_bfrev_b32", e2_, 2)
            P.v("v_cndmask_b32", astx, e2_, e1_, "vcc")
        pa2 = proj_init(win, 2, CV[win][2][1])
        if nxt is not None and CFG["kb"]: kstep(nxt, CFG["kb"])
        bar(f"Bb{win}", [("O", 2), ("OX",)] + OUT3[:eo] + (XTr(0, 9) if win == 0 else []) + (XTr(9, 16) if win == 1 else []))
        proj_tile(win, 2, pa2)
        out_rows(win, range(0, 2 * eo))
        if win < 3:
            pX = softmaxX(win, sX); oX = pvX(win, pX, VA); onorm(win, "X", oX)
            convK(n2, nxt, CFG["ki"])
    pa = proj_init(3, "X", None)
    proj_tile(3, "X", pa, axrd, astx)
    bar("Bz", OUT3[eo:])
    out_rows(3, range(2 * eo, 7))
    return P, ra, nfixed

def emit(path, mode="idx", stamps=False, trace=None, **kw):
    sched.SYNC_DIST[0] = CFG['sdist']
    P, ra, nfixed = gen(stamps)
    head = []
    late = [(set(V(4 * k, 4).regs()), [4 * k]) for k in range(5)] + [(set(convA.regs()), [convA.i + 4 * k for k in range(9)])]
    skw = {k: CFG[k] for k in ("kahead", "window", "merge", "reserve", "vm_gap", "l2lat", "inflight", "st_gap", "w_gap", "w_wt", "mslack", "ldsq", "ldslat", "fslack", "vwin", "kscan", "bw", "tagoff", "tstall", "hbmlat", "dmaf", "dmaw", "chainp", "dmac") if k in CFG}
    lines, st, marks = schedule5(P.ins, list(range(20, NPOOL, 4)), late, ra.octs, nfixed=nfixed, t0=250, trace=trace, **skw)
    print("sim", st, marks)
    cnt = {}
    for i in P.ins:
        for x in flat(i): cnt[x.kind] = cnt.get(x.kind, 0) + 1
    print(cnt)
    if stamps:
        FS = list(range(3, 16)) + [47, 50, 51] + list(range(93, 102))
        nl = []; k = 0
        def stamp(k):
            return ["    s_memtime s[82:83]", "    s_waitcnt lgkmcnt(0)", f"    s_sub_u32 s{FS[k]}, s82, s78"]
        for l in lines:
            if ("s_barrier" in l or "L_back" in l) and stamps != 2:
                nl.append(l); nl += stamp(k); k += 1
            else: nl.append(l)
        nl += stamp(k)
        nl += ["    s_waitcnt vmcnt(0)"] + stamp(k + 1)
        nl += ["    s_memrealtime s[82:83]", "    s_waitcnt lgkmcnt(0)", "    v_mov_b32 v1, 0"]
        nl += [f"    v_writelane_b32 v1, s{FS[j]}, {j}" for j in range(k + 2)]
        nl += ["    v_writelane_b32 v1, s80, 62", "    v_writelane_b32 v1, s82, 63",
               "    s_mov_b32 s74, 0x10000000", "    s_mov_b32 s75, 0x20000",
               "    v_mbcnt_lo_u32_b32 v0, -1, 0", "    v_mbcnt_hi_u32_b32 v0, -1, v0", "    v_lshlrev_b32 v0, 2, v0",
               "    s_lshl_b32 s82, s2, 2", "    s_add_u32 s82, s82, s36", "    s_lshl_b32 s82, s82, 8",
               "    buffer_store_dword v1, v0, s[72:75], s82 offen"]
        lines = nl
    slow = []
    import re
    for l in lines:
        m = re.search(r"; poll (\d+)$", l)
        if m:
            k = m.group(1)
            cmp_ = [x for x in lines if "v_cmp_gt_u32" in x and f"; chk {k} " in x][0]
            slow += [f"L_slow{k}:", l.split(";")[0].rstrip(), "    s_waitcnt lgkmcnt(0)", cmp_.split(";")[0].rstrip(),
                     f"    s_cbranch_vccnz L_slow{k}", f"    s_branch L_back{k}"]
    lines = [l.replace("s_getpc_b64 s[88:89]", "s_getpc_b64 s[88:89]\nL_pc:").replace("CODE_REMAIN", "L_end-L_pc") for l in lines]
    src = open("cdna_kernels/" + NAME + ".s.ref").read().split("\n")
    hdr = [l for l in src if l.startswith(";") and "@launch" not in l]
    txt = "\n".join(hdr) + f"\n; @launch grid=(256,1,1) block=(256,1,1) lds={LDS_TOTAL}\n"
    txt += f""".amdgcn_target "amdgcn-amd-amdhsa--gfx950"
.text
.globl {NAME}_kernel
.p2align 8
.type {NAME}_kernel,@function
{NAME}_kernel:
""" + "\n".join(head) + "\n" + "\n".join(lines) + f"""
L_end:
    s_endpgm
""" + "\n".join(slow) + f"""
.section .rodata,"a"
.p2align 6
.amdhsa_kernel {NAME}_kernel
  .amdhsa_next_free_vgpr 512
  .amdhsa_next_free_sgpr 102
  .amdhsa_accum_offset 256
  .amdhsa_group_segment_fixed_size 0
  .amdhsa_kernarg_size 56
  .amdhsa_user_sgpr_count 2
  .amdhsa_user_sgpr_kernarg_segment_ptr 1
  .amdhsa_system_sgpr_workgroup_id_x 1
.end_amdhsa_kernel
"""
    open(path, "w").write(txt)

if __name__ == "__main__":
    import argparse
    ap = argparse.ArgumentParser()
    ap.add_argument("-o", default="cdna_kernels/" + NAME + ".s")
    ap.add_argument("--mode", default="idx")
    ap.add_argument("--stamps", type=int, default=0)
    ap.add_argument("--trace", default="")
    ap.add_argument("--cfg", default="")
    ap.add_argument("--json", default="")
    a = ap.parse_args()
    if a.json:
        import json; CFG.update(json.load(open(a.json)))
    for kv in a.cfg.split(","):
        if kv:
            k, v = kv.split("="); CFG[k] = int(v) if v.lstrip("-").isdigit() else (float(v) if v.replace(".","").isdigit() else v)
    tr = [] if a.trace else None
    emit(a.o, a.mode, a.stamps, tr)
    if a.trace:
        open(a.trace, "w").write("\n".join(f"{t} {tag:12s} {txt}" for t, txt, tag in tr))
```

```python
import sys, math, struct
from sched import *
from sched5 import schedule5
import sched

NAME = "standalone__window_attn_davit__vision"
def f32bits(x): return struct.unpack("<I", struct.pack("<f", x))[0]

ROW = 3744; PIX = 416
XT = 0
SM = 59904
HX_OFF, OX_OFF, X0X_OFF = 0, 1536, 3072
HB = SM + 4608
H_OFF = [1024, 25600]; BC_OFF = 19456; ST_OFF = 23552; O_OFF = 44032
ST2D = O_OFF + 16384 - ST_OFF
RING = HB + 62464
NR = 3
OUTB = RING; OPX = 400
LDS_TOTAL = RING + 36864
SRB = HB + H_OFF[1]
LOC = {"R0": RING, "R1": RING + 12288, "R2": RING + 24576, "H": HB + H_OFF[1], "O": HB + O_OFF, "X0": XT + 9 * ROW, "X1": XT + 9 * ROW + 12288}
PATCH = HB + O_OFF
assert LDS_TOTAL <= 163840

def V(i, n=1): return R("v", i, n)
def A(i, n=1): return R("a", i, n)
def S(i, n=1): return R("s", i, n)

NPOOL = 136
p_ = [NPOOL]
def fix(n):
    r = V(p_[0], n); p_[0] += n; return r
convA = fix(36); WOV = fix(32); KX = fix(6); QX = fix(6); VB = fix(12); ONES = fix(6); IDENT = fix(2)
aCV = fix(6)
aCV1 = [aCV[k] for k in range(3)]; aCV2 = [aCV[3 + k] for k in range(3)]
aOW = [fix(1) for _ in range(3)]
aW128, aW64, aRD, aBCR, aSTW, aXW128, aXW64, voffX, aOR, voffO, SIDX = [fix(1) for _ in range(11)]
SPARE = p_[0]
assert SPARE <= 256, SPARE

class RA:
    def __init__(s): s.n = 0; s.octs = []
    def q(s):
        s.n += 1; return R("q", 4 * (s.n - 1), 4)
    def o(s):
        s.octs.append(s.n); s.n += 2; return R("q", 4 * (s.n - 2), 8)
    def p(s): return s.q()[0:2]
    def rel(s, *rs): pass

def wunit(sl, ks):
    base = (sl * 6 + ks) * 12
    return [A(base + 4 * ft, 4) if base + 4 * ft < 256 else WOV[base + 4 * ft - 256:base + 4 * ft - 252] for ft in range(3)]
SL_K, SL_V, SL_Q, SL_O = 0, 1, 2, 3
SL_COL = {SL_Q: 0, SL_K: 384, SL_V: 768}

srdX, srdDW, srdWQ, srdWO, srdOUT = S(16, 4), S(20, 4), S(24, 4), S(28, 4), S(32, 4)
sW, sXCD, sCOL, sROW, sM0, sTMP, sTMP2, sWOFF, sC, sINV, sEPS = [S(36 + i) for i in range(11)]
sM6 = S(48, 2)
sM1, sM2, sM3, sS7 = S(52, 2), S(54, 2), S(56, 2), S(58, 2)
sMX = [S(60 + 2 * i, 2) for i in range(4)]
sSO = [S(68 + i) for i in range(4)]
sT3 = S(76, 2)
sA, sB, sD, sE = S(84), S(85), S(86), S(87)
sPC = S(88, 2)
sRS, sGS, sRW = S(90), S(91), S(92)
sXR = S(85)
sWB, sOB = S(20, 2), S(22, 2)
sGB = [S(88, 2), S(0, 2)]

CFG = dict(xt0=2300, xdt=115, wdt=74, w0=-300, rf_at=24, hoist=3, xfirst=23, k0i=0, kb=1, ki=3, eo=2, bw=0.0, accres=0, kH=3, kO1=99, kO2=0, kX=8, gl=0, cl=3, cl0=2, chainp=1, b0=1, xf="nt", pf="nt", iv=0, fine3=0, su=1, tfirst=1, tstall=2400, soft=0, hard="B2/Bz", sdist=150, mix=0, split0=1, slots="R0/R1/R2/H/R0/R1/R2/R0/X0/X1/R1/R2/R0/X0/X1/R1/R2/R0/X0/X1/R1/R2/R0/X0", stflags="nt", w_gap=72, codepf=1, kahead=10, fslack=10, window=250)

def gen(stamps=False):
    P = Prog(); ra = RA()
    P.track_scc = True
    tid, lane, t_, g_ = V(0), V(1), V(2), V(3)
    tmp1, tmp2, tmp3, tmp4 = V(4), V(5), V(6), V(7)
    pixr, chr_, hi, vp = V(8), V(9), V(10), V(11)
    dA, dB, dC, cpd = V(12), V(13), V(14), V(15)
    tch, tch2, td1, td2 = V(16), V(17), V(18), V(19)
    H = P
    P.tag = "head"
    if stamps:
        H.raw("s_memtime s[78:79]", "smem", wr=["s78", "s79"]); H.raw("s_memrealtime s[80:81]", "smem", wr=["s80", "s81"])
    for k, o in ((16, 0), (20, 8), (24, 16), (28, 24), (32, 32)):
        H.raw(f"s_load_dwordx2 s[{k}:{k+1}], s[0:1], {o}", "smem", wr=[f"s{k}", f"s{k+1}"])
    if stamps: H.raw("s_load_dwordx2 s[72:73], s[0:1], 48", "smem", wr=["s72", "s73"])
    H.raw("s_cmp_ge_u32 s2, 256")
    H.raw("s_cbranch_scc1 L_end")
    clk = [CFG["xt0"]]
    H.s("s_lshr_b32", sCOL, S(2), 3, scc=True)
    if CFG["codepf"]:
        H.raw("s_getpc_b64 s[88:89]", wr=["s88", "s89"])
        H.v("v_lshrrev_b32", tmp1, 4, tid)
        H.v("v_lshlrev_b32", tmp1, 7, tmp1)
        H.v("v_lshl_add_u32", tmp1, sCOL, 11, tmp1)
        H.v("v_min_u32", tmp1, "CODE_REMAIN", tmp1)
        H.v("v_mov_b32", tmp2, S(89))
        H.add(Ins(f"v_add_co_u32 {tmp1}, vcc, s88, {tmp1}", "valu", tmp1.regs() + ["s88"], tmp1.regs() + ["vcc"]))
        H.v("v_and_b32", lane, 63, tid)
        H.v("v_lshrrev_b32", tmp3, 6, tid)
        H.add(Ins(f"v_addc_co_u32 {tmp2}, vcc, 0, {tmp2}, vcc", "valu", tmp2.regs() + ["vcc"], tmp2.regs() + ["vcc"]))
        i = P.add(Ins(f"global_load_dword {cpd}, v[4:5], off", "vld", ["v4", "v5"], cpd.regs(),
                      res_rd=("VM",), res_wr=("VM",)))
        i.arrive = clk[0]
    H.v("v_readfirstlane_b32", sW, tmp3)
    H.s("s_and_b32", sXCD, S(2), 7, scc=True)
    H.s("s_mov_b32", srdX[2], 19267584); H.s("s_mov_b32", srdX[3], "0x20000")
    H.s("s_mul_i32", sTMP, sW, 60)
    H.s("s_min_u32", sTMP, sTMP, 170, scc=True)
    H.s("s_mul_i32", sTMP2, sCOL, 7)
    H.s("s_sub_u32", sTMP2, sTMP2, 1, scc=True)
    H.v("v_add_u32", tmp3, sTMP, lane)
    H.v("v_mul_u32_u24", pixr, 2521, tmp3)
    H.v("v_lshrrev_b32", pixr, 16, pixr)
    H.v("v_mul_u32_u24", chr_, 26, pixr)
    H.v("v_sub_u32", chr_, tmp3, chr_)
    H.v("v_add_u32", tmp2, sTMP2, pixr)
    H.v("v_cmp_gt_u32", sT3, 24, chr_)
    H.v("v_cmp_gt_u32", "vcc", 224, tmp2)
    H.v("v_mul_u32_u24", tmp2, 384, tmp2)
    H.v("v_lshl_add_u32", tmp2, chr_, 4, tmp2)
    H.s("s_and_b64", "vcc", "vcc", sT3, scc=True)
    H.v("v_bfrev_b32", tmp4, 2)
    H.s("s_lshl_b32", sM0, sTMP, 4, scc=True)
    H.v("v_cndmask_b32", voffX, tmp4, tmp2, "vcc")
    H.s("s_mul_i32", sROW, sXCD, 28 * 86016)
    H.s("s_mov_b32", sGS, 86016)
    H.s("s_movk_i32", sRS, ROW)
    H.s("s_sub_u32", sSO[0], sROW, sGS, scc=True)
    H.s("s_cselect_b32", sSO[0], "0x40000000", sSO[0], rdscc=True)
    H.s("s_add_u32", sSO[1], sROW, 7 * 86016, scc=True)
    H.v("v_mul_u32_u24", tmp1, 43, lane)
    H.v("v_lshrrev_b32", tmp1, 8, tmp1)
    H.v("v_mul_u32_u24", tmp2, 384 - 96, tmp1)
    H.v("v_lshl_add_u32", dA, lane, 4, tmp2)
    H.s("s_movk_i32", srdDW[2], 3456); H.s("s_mov_b32", srdDW[3], srdX[3])
    H.s("s_mul_i32", sWOFF, sW, 96)
    H.s("s_lshl_b32", sD, sW, 10, scc=True)
    H.s("s_add_u32", sD, sD, HB + H_OFF[0], scc=True)
    H.s("s_mov_b32", "m0", sD)
    H.raw("s_waitcnt lgkmcnt(0)")
    P.tag = "dma dw"
    P.dma(dA, srdDW, sWOFF, [("DW",)]); P.ins[-1].arrive = clk[0]
    P.s("s_add_u32", "m0", sM0, 8 * ROW)
    P.raw("s_nop 0")
    P.track_scc = False
    def arr(dt):
        clk[0] += dt; P.ins[-1].arrive = clk[0]
    def rows0():
        for r in range(8, -1, -1):
            P.tag = f"dma r{r}"
            if r < 8:
                P.s("s_sub_u32", "m0", "m0", sRS)
                if r > 0: P.s("s_sub_u32", sSO[1], sSO[1], sGS)
                else: P.raw("s_nop 0")
            P.dma(voffX, srdX, sSO[1] if r else sSO[0], [("XT", r)], CFG["xf"]); arr(CFG["xdt"])
    def touches():
        P.tag = "dma touch"
        P.s("s_mov_b32", srdWQ[2], 221184); P.s("s_mov_b32", srdWQ[3], srdX[3])
        P.s("s_mov_b32", srdWO[2], 73728); P.s("s_mov_b32", srdWO[3], srdX[3])
        P.v("v_lshrrev_b32", tch, 2, tid)
        P.v("v_lshlrev_b32", tch, 7, tch)
        P.s("s_lshl_b32", sB, sCOL, 13)
        P.vld("buffer_load_dword", td1, tch, srdWQ, sB); arr(0)
        P.s("s_xor_b32", sB, sB, 31 << 13)
        P.vld("buffer_load_dword", td2, tch, srdWO, sB); arr(0)
    rows0()
    nfixed = len(P.ins)
    def patches():
        P.tag = "dma patch"
        P.v("v_mul_u32_u24", tmp1, 86, pixr)
        P.v("v_lshrrev_b32", tmp1, 8, tmp1)
        P.v("v_mul_u32_u24", tmp2, 3, tmp1)
        P.v("v_sub_u32", tmp2, pixr, tmp2)
        P.v("v_add_u32", tmp2, sTMP2, tmp2)
        P.v("v_cmp_le_i32", "vcc", 0, tmp2)
        P.v("v_mul_u32_u24", tmp1, 7 * 86016, tmp1)
        P.v("v_mul_u32_u24", tmp2, 384, tmp2)
        P.s("s_and_b64", "vcc", "vcc", sT3)
        P.v("v_lshl_add_u32", tmp2, chr_, 4, tmp2)
        P.v("v_add_u32", tmp2, tmp2, tmp1)
        P.v("v_cndmask_b32", vp, tmp4, tmp2, "vcc")
        for r in range(3):
            if r == 0:
                P.s("s_add_u32", "m0", sM0, PATCH); P.s("s_add_u32", sSO[1], sROW, 12 * 86016)
            else:
                P.s("s_add_u32", "m0", "m0", sRS); P.s("s_add_u32", sSO[1], sSO[1], sGS)
            P.dma(vp, srdX, sSO[1], [("PATCH",)], CFG["pf"]); arr(CFG["xdt"])
    if CFG['tfirst']: touches(); patches()
    else: patches(); touches()
    P.tag = "dw"
    P.v("v_and_b32", t_, 15, lane)
    P.v("v_lshrrev_b32", g_, 4, lane)
    P.v("v_lshrrev_b32", hi, 5, lane)
    P.v("v_lshl_add_u32", dA, t_, 1, sD)
    P.v("v_add_u32", dB, g_, hi)
    P.v("v_mul_u32_u24", dB, 96, dB)
    P.v("v_add_u32", dB, dB, dA)
    P.v("v_lshlrev_b32", dC, 2, g_)
    P.s("s_mov_b32", sE, "0x8276")
    P.v("v_bfe_u32", dC, sE, dC, 4)
    P.v("v_mul_u32_u24", dC, 96, dC)
    P.v("v_add_u32", dC, dC, dA)
    def cA(ct, p): return convA[(ct * 3 + p) * 4:(ct * 3 + p) * 4 + 4]
    for p in range(3):
        for ct in range(3):
            P.dsr("ds_read_u16", cA(ct, p)[3], (dA, dB, dC)[p], (5 * 96 if p == 0 else 0) + 32 * ct, res=[("DW",)])

    so_i = [1]
    def nso():
        so_i[0] = (so_i[0] + 1) % 4
        return sSO[so_i[0]]
    def xrow(r, slot, dt=None):
        P.tag = f"dma r{r}"
        so = nso()
        P.s("s_add_u32", "m0", sM0, XT + slot * ROW)
        P.s("s_add_u32", so, sROW, (r - 1) * 86016)
        P.dma(voffX, srdX, so, [("XT", slot)], CFG["xf"]); arr(CFG["xdt"] if dt is None else dt)
    P.tag = "addr"
    e1 = ra.q(); e2 = ra.q(); pxq = ra.q(); aPW, aPR = pxq[0], pxq[1]
    shv, u_, yv, xv = e1[0], e1[1], e1[2], e1[3]
    cvb, oc, h1, h2 = e2[0], e2[1], e2[2], e2[3]
    P.v("v_and_b32", tmp1, 16, lane)
    P.v("v_add_u32", cvb, sWOFF, tmp1)
    P.v("v_add_u32", u_, 4, t_)
    P.v("v_bfe_u32", oc, u_, 3, 1)
    P.v("v_and_b32", xv, 7, u_)
    P.v("v_mul_u32_u24", h1, PIX, hi)
    P.v("v_mul_u32_u24", h2, 2 * ROW, hi)
    P.s("s_mov_b32", sS7[0], "0x08080808"); P.s("s_mov_b32", sS7[1], sS7[0])
    P.v("v_add_u32", tmp2, 1, oc)
    P.v("v_cndmask_b32", xv, xv, tmp2, sS7)
    P.v("v_cndmask_b32", yv, oc, 6, sS7)
    P.v("v_mad_u32_u24", tmp3, yv, 9, xv)
    P.v("v_mul_u32_u24", tmp3, PIX, tmp3)
    P.v("v_add3_u32", aCV1[0], tmp3, cvb, h1)
    P.v("v_add3_u32", aCV2[0], tmp3, cvb, h2)
    P.v("v_cndmask_b32", tmp3, 18, 2, sS7)
    P.v("v_mul_u32_u24", tmp3, PIX, tmp3)
    for j in (1, 2):
        P.v("v_add_u32", aCV1[j], aCV1[j - 1], tmp3); P.v("v_add_u32", aCV2[j], aCV2[j - 1], tmp3)
    P.v("v_and_b32", tmp1, 3, lane)
    P.v("v_mul_u32_u24", SIDX, "0x5555", tmp1)
    P.v("v_lshlrev_b32", shv, 4, lane)
    P.v("v_and_b32", shv, 16, shv)
    P.tag = "convA"
    P.begin_bundle()
    P.raw("s_mov_b32 exec_hi, 0")
    for ct in range(3): P.v("v_mov_b32", cA(ct, 0)[3], "0x3f80", rmw=True)
    P.raw("s_mov_b32 exec_hi, -1")
    P.end_bundle()
    for ct in range(3): P.v("v_lshlrev_b32", cA(ct, 0)[3], shv, cA(ct, 0)[3])
    for (ps, m0_, sh) in (((0,), "0x03000003", 2), ((1, 2), "0x000f000f", 4)):
        for j in range(4):
            if j == 0:
                P.raw(f"s_mov_b32 vcc_lo, {m0_}", wr=["vcc"]); P.raw("s_mov_b32 vcc_hi, vcc_lo", rd=["vcc"], wr=["vcc"])
            else: P.raw(f"s_lshl_b64 vcc, vcc, {sh}", rd=["vcc"], wr=["vcc"])
            for p in ps:
                for ct in range(3): P.v("v_cndmask_b32", cA(ct, p)[j], 0, cA(ct, p)[3], "vcc")

    P.tag = "addr"
    wo4 = ra.q(); wo4b = ra.q(); sr2 = ra.q(); aSR, aSRb, aXRD = sr2[0], sr2[1], sr2[2]; cxq = ra.q(); aCX1, aCX2 = cxq[0], cxq[1]
    for j in range(3):
        P.v("v_add_u32", tmp2, 64 * j, lane)
        P.v("v_mul_u32_u24", tmp3, 43691, tmp2)
        P.v("v_lshrrev_b32", tmp3, 18, tmp3)
        P.v("v_mul_u32_u24", tmp4, 6, tmp3)
        P.v("v_sub_u32", tmp2, tmp2, tmp4)
        P.v("v_lshlrev_b32", tmp2, 4, tmp2)
        if j: P.v("v_subrev_u32", tmp2, 1024 * j, tmp2)
        if j == 1: P.v("v_cmp_lt_u32", "vcc", 15, tmp3)
        for w4, stride in ((wo4, 1152), (wo4b, 384)):
            P.v("v_mul_u32_u24", tmp4, stride, tmp3)
            P.v("v_add_u32", w4[j], tmp2, tmp4)
            if j == 1:
                P.v("v_add_u32", tmp4, 32 * stride, w4[1])
                P.v("v_cndmask_b32", w4[3], w4[1], tmp4, "vcc")
    P.s("s_mul_i32", sRW, sW, 3072)
    P.v("v_lshrrev_b32", tmp2, 2, lane)
    P.v("v_mul_u32_u24", tmp2, 96, tmp2)
    P.v("v_and_b32", tmp3, 3, lane)
    P.v("v_lshl_add_u32", tmp2, tmp3, 3, tmp2)
    P.v("v_add_u32", aSR, sRW, tmp2)
    P.v("v_add_u32", aSRb, SRB, aSR)
    gb_i = [0]
    if CFG["gl"]:
        for d_, s_ in ((sWB, srdWQ), (sOB, srdWO)):
            P.begin_bundle()
            P.s("s_add_u32", d_[0], s_[0], sWOFF); P.s("s_addc_u32", d_[1], s_[1], 0)
            P.end_bundle(); P.ins[-1].kind = "salu"
    def wdma(sl, ks, slot):
        P.tag = f"wload{sl}.{ks}"
        stride = 384 if sl == SL_O else 1152
        srd = srdWO if sl == SL_O else srdWQ
        col = 0 if sl == SL_O else SL_COL[sl]
        w4 = wo4b if sl == SL_O else wo4
        row0 = 48 * ks if ks < 4 else 96 * (ks - 4) + 32
        P.s("s_add_u32", "m0", sRW, LOC[slot])
        if CFG["gl"]:
            def nb(off):
                gb_i[0] ^= 1; sb_ = sGB[gb_i[0]]
                P.begin_bundle()
                P.s("s_add_u32", sb_[0], (sWB if sl != SL_O else sOB)[0], off)
                P.s("s_addc_u32", sb_[1], (sWB if sl != SL_O else sOB)[1], 0)
                P.end_bundle(); P.ins[-1].kind = "salu"
                return sb_
            sb_ = nb(col + row0 * stride)
            for j in range(3):
                if ks >= 4 and j == 2: sb_ = nb(col + (row0 + 32) * stride)
                vo = w4[3] if (ks >= 4 and j == 1) else w4[j]
                P.add(Ins(f"global_load_lds_dwordx4 {vo}, {sb_}" + (f" offset:{1024 * j}" if j else ""), "dma",
                          vo.regs() + sb_.regs() + ["m0"], (), res_rd=("VM",), res_wr=(("RG", slot), "VM"))); arr(CFG["wdt"])
            return slot
        so = nso(); P.s("s_add_u32", so, sWOFF, col + row0 * stride)
        for j in range(3):
            if ks >= 4 and j == 2:
                so = nso(); P.s("s_add_u32", so, sWOFF, col + (row0 + 32) * stride)
            vo = w4[3] if (ks >= 4 and j == 1) else w4[j]
            P.dma(vo, srd, so, [("RG", slot)], "", off=1024 * j); arr(CFG["wdt"])
        return slot
    def wtr(sl, ks, slot):
        P.tag = f"wtr{sl}.{ks}"
        u = wunit(sl, ks)
        for ft in range(3):
            for hb in range(2):
                P.dsr("ds_read_b64_tr_b16", u[ft][2 * hb:2 * hb + 2], aSR if slot[0] == "X" else aSRb,
                      LOC[slot] - (0 if slot[0] == "X" else SRB) + hb * 1536 + 32 * ft, res=[("RG", slot)])
    units = [(sl, ks) for sl in (SL_K, SL_Q, SL_V, SL_O) for ks in range(6)]
    SLOTS = []; lru = {}
    for k in range(24):
        av = ["R0", "R1", "R2"] + (["H"] if k <= CFG["kH"] else []) + (["O"] if CFG["kO1"] <= k <= CFG["kO2"] else []) + (["X0", "X1"] if k >= CFG["kX"] else [])
        s_ = min(av, key=lambda x: lru.get(x, -1)); lru[s_] = k; SLOTS.append(s_)
    assert len(SLOTS) == 24
    wstate = dict(d=0, t=0)
    def wstep(upto_dma, upto_tr=0):
        while wstate["d"] < upto_dma:
            n_ = wstate["d"]
            prev = [k for k in range(n_) if SLOTS[k] == SLOTS[n_]]
            if prev:
                while wstate["t"] <= prev[-1]:
                    wtr(*units[wstate["t"]], SLOTS[wstate["t"]]); wstate["t"] += 1
            wdma(*units[n_], SLOTS[n_]); wstate["d"] += 1
        while wstate["t"] < upto_tr:
            wtr(*units[wstate["t"]], SLOTS[wstate["t"]]); wstate["t"] += 1
    for r in range(9, 16):
        xrow(r, r)
        if CFG["mix"] and (r - 9) % CFG["mix"] == CFG["mix"] - 1:
            c0 = clk[0]; wstep(wstate["d"] + 1); clk[0] = c0 + 60
    clk[0] += CFG["w0"]
    firstO = SLOTS.index("O") if "O" in SLOTS else 99; firstX = min(SLOTS.index("X0"), SLOTS.index("X1"))
    lastHO = max(k for k in range(24) if SLOTS[k] in ("H", "O"))
    assert lastHO < firstX
    wstep(min(firstO, firstX))
    def late_setup():
        P.tag = "addr"
        for m, val in ((sM1, 0x22222222), (sM2, 0x44444444), (sM3, 0x88888888)):
            P.s("s_mov_b32", m[0], hex(val)); P.s("s_mov_b32", m[1], m[0])
        for k in range(4): P.v("v_mov_b32", ONES[k], "0x3f803f80" if k == 0 else ONES[0])
        P.v("v_lshlrev_b32", tmp1, 4, lane)
        P.v("v_add_u32", aRD, HB, tmp1)
        P.s("s_lshl_b32", sTMP, sW, 10)
        P.v("v_add_u32", aW128, sTMP, aRD)
        P.s("s_add_u32", sT3[1], sTMP, HB + BC_OFF)
        P.v("v_lshl_add_u32", aBCR, t_, 4, sT3[1])
        P.s("s_lshr_b32", sTMP, sW, 1)
        P.s("s_and_b32", sTMP2, sW, 1)
        P.s("s_lshl_b32", sTMP2, sTMP2, 3)
        P.s("s_lshl_b32", sT3[0], sTMP, 10)
        P.s("s_add_u32", sT3[0], sT3[0], sTMP2)
        P.s("s_add_u32", sA, sT3[0], HB + ST_OFF)
        P.v("v_lshl_add_u32", tmp2, t_, 4, sA)
        P.v("v_lshrrev_b32", tmp3, 2, t_)
        P.v("v_cmp_eq_u32", "vcc", tmp3, g_)
        P.v("v_add_u32", tmp3, 8, aBCR)
        P.v("v_cndmask_b32", aSTW, tmp3, tmp2, "vcc")
        P.s("s_add_u32", sT3[0], sT3[0], 4096)
        P.v("v_add_u32", aW64, sT3[0], aRD)
        P.s("s_mov_b32", sINV, hex(f32bits(1.0 / 192)))
        P.s("s_mov_b32", sEPS, hex(f32bits(1e-5)))
        P.v("v_and_b32", tmp1, 3, lane)
        P.v("v_mul_u32_u24", tmp3, 3 * PIX, tmp1)
        P.v("v_add_u32", tmp3, PATCH - 3 * PIX, tmp3)
        P.v("v_mov_b32", tmp4, XT + 6 * ROW)
        P.v("v_cmp_eq_u32", "vcc", 0, tmp1)
        P.v("v_cndmask_b32", tmp3, tmp3, tmp4, "vcc")
        P.v("v_add3_u32", aCX1, tmp3, cvb, h1)
        P.v("v_add3_u32", aCX2, tmp3, cvb, h2)
        P.v("v_lshl_add_u32", tmp2, g_, 2, tmp1)
        P.v("v_lshlrev_b32", tmp2, 4, tmp2)
        P.v("v_add_u32", aXRD, SM, tmp2)
        P.s("s_lshl_b32", sT3[0], sW, 8)
        P.v("v_add_u32", aXW128, sT3[0], aXRD)
        P.s("s_add_u32", sTMP, sTMP, 4)
        P.s("s_lshl_b32", sT3[0], sTMP, 8)
        P.s("s_add_u32", sT3[0], sT3[0], sTMP2)
        P.v("v_add_u32", aXW64, sT3[0], aXRD)
    def late_setup2():
        P.tag = "addr"
        P.s("s_mov_b32", srdOUT[2], 19267584); P.s("s_mov_b32", srdOUT[3], "0x20000")
        P.s("s_mov_b32", sC, hex(f32bits(48 ** -0.5 * math.log2(math.e))))
        for k in range(4):
            P.s("s_mov_b32", sMX[k][0], hex(0x11111111 << k)); P.s("s_mov_b32", sMX[k][1], hex(0x11111111 << k))
        P.v("v_cmp_gt_u32", "vcc", 16, lane)
        P.v("v_cndmask_b32", ONES[4], 0, ONES[0], "vcc")
        P.v("v_mov_b32", ONES[5], ONES[4])
        P.v("v_mov_b32", tmp3, "0x3f80")
        P.v("v_lshlrev_b32", tmp3, shv, tmp3)
        P.raw("s_mov_b32 vcc_lo, 0x00300003", wr=["vcc"]); P.raw("s_mov_b32 vcc_hi, 0x30000300", rd=["vcc"], wr=["vcc"])
        P.v("v_cndmask_b32", IDENT[0], 0, tmp3, "vcc")
        P.raw("s_lshl_b64 vcc, vcc, 2", rd=["vcc"], wr=["vcc"])
        P.v("v_cndmask_b32", IDENT[1], 0, tmp3, "vcc")
        P.s("s_add_u32", sTMP, sWOFF, OUTB)
        P.v("v_lshl_add_u32", tmp1, g_, 3, sTMP)
        P.v("v_mad_u32_u24", tmp3, yv, 7, xv)
        P.v("v_mul_u32_u24", tmp3, OPX, tmp3)
        P.v("v_add_u32", aOW[0], tmp3, tmp1)
        P.v("v_cndmask_b32", tmp3, 14, 2, sS7)
        P.v("v_mul_u32_u24", tmp3, OPX, tmp3)
        for j in (1, 2): P.v("v_add_u32", aOW[j], aOW[j - 1], tmp3)
        P.s("s_mul_i32", sTMP, sW, 40)
        P.v("v_add_u32", tmp1, sTMP, lane)
        P.v("v_min_u32", tmp2, 167, tmp1)
        P.v("v_mul_u32_u24", tmp3, 2731, tmp2)
        P.v("v_lshrrev_b32", tmp3, 16, tmp3)
        P.v("v_add_u32", tmp3, tmp3, tmp2)
        P.v("v_lshlrev_b32", tmp3, 4, tmp3)
        P.v("v_add_u32", aOR, OUTB, tmp3)
        P.s("s_mul_i32", sTMP2, sCOL, 7 * 384)
        P.v("v_lshl_add_u32", tmp2, tmp1, 4, sTMP2)
        P.s("s_add_u32", sTMP, sW, 1)
        P.s("s_and_b32", sTMP, sTMP, 4)
        P.s("s_lshl_b32", sTMP, sTMP, 1)
        P.s("s_add_u32", sTMP, sTMP, 40)
        P.v("v_bfrev_b32", tmp4, 2)
        P.v("v_cmp_gt_u32", "vcc", sTMP, lane)
        P.v("v_cndmask_b32", voffO, tmp4, tmp2, "vcc")
        P.v("v_cmp_lt_u32", sM6, 23, tmp1)

    PAIR_OFF = [0, ROW, ROW + PIX, 2 * ROW, 2 * PIX]

    def pack3(acc, pd=None):
        a, b, c = acc
        P.v("v_cvt_pk_bf16_f32", a[0], a[0], a[1]); P.v("v_cvt_pk_bf16_f32", a[1], a[2], a[3])
        P.v("v_cvt_pk_bf16_f32", a[2], b[0], b[1]); P.v("v_cvt_pk_bf16_f32", a[3], b[2], b[3])
        if pd is None: pd = c[0:2]
        P.v("v_cvt_pk_bf16_f32", pd[0], c[0], c[1]); P.v("v_cvt_pk_bf16_f32", pd[1], c[2], c[3])
        return a, pd

    def conv_tile(win, tt, stat_tile, xp=None):
        sb = 1 if win in (1, 'X') else 0
        P.tag = f"conv{win}.{tt}"
        acc = [ra.q() for _ in range(3)]
        if win == "X":
            a1, a2, base = aCX1, aCX2, 0
            res = [("XT", r) for r in (6, 7, 8)] + [("PATCH",)]
        else:
            a1, a2, base = aCV1[tt], aCV2[tt], (win & 1) * 7 * ROW
            r0 = (win & 1) * 7
            res = [("XT", r0 + r) for r in sorted(set(list(range(2 * tt, 2 * tt + 4)) + [6, 7, 8]))]
        for ct in range(3):
            f = ra.q()
            P.dsr("ds_read_b128", f, a1, base + PAIR_OFF[2] + 32 * ct, res=res)
            P.mfma32(acc[ct], cA(ct, 0), f, 0)
        for sp, (pa, pb) in enumerate(((0, 1), (3, 4))):
            for ct in range(3):
                f = ra.o()
                P.dsr("ds_read_b128", f[0:4], a1, base + PAIR_OFF[pa] + 32 * ct, res=res)
                P.dsr("ds_read_b128", f[4:8], a2 if pb == 4 else a1, base + PAIR_OFF[pb] + 32 * ct, res=res)
                P.smf(acc[ct], cA(ct, 1 + sp), f, SIDX)
        P.tag = f"stat{win}.{tt}"
        xq = ra.q()
        if xp is None: xp = ra.p()
        for k in range(4): P.v("v_cvt_pk_bf16_f32", xq[k], acc[k >> 1][2 * (k & 1)], acc[k >> 1][2 * (k & 1) + 1])
        for k in range(2): P.v("v_cvt_pk_bf16_f32", xp[k], acc[2][2 * k], acc[2][2 * k + 1])
        if win == "X":
            P.dsw("ds_write_b128", aXW128, xq, X0X_OFF, res=[("X0X",)])
            P.dsw("ds_write_b64", aXW64, xp, X0X_OFF, res=[("X0X",)])
        sm, gr = ra.q(), ra.q()
        P.mfma32(gr, xq, xq, 0)
        P.mfma32(sm, ONES[0:4], xq, 0)
        P.mfma16(gr, xp, xp, gr)
        P.mfma16(sm, ONES[0:2], xp, sm)
        ra.rel(xq, xp)
        P.v("v_cndmask_b32", gr[0], gr[0], gr[1], sM1)
        P.v("v_cndmask_b32", gr[0], gr[0], gr[2], sM2)
        P.v("v_cndmask_b32", sm[1], gr[0], gr[3], sM3)
        P.dsw("ds_write_b64", aSTW, sm[0:2], sb * ST2D + 256 * stat_tile, res=[("ST", stat_tile + 4 * sb)])
        return acc, (xq, xp)

    def norm_head(win, ntiles):
        P.tag = f"fin{win}"
        a, b = ra.q(), ra.q()
        sb = 1 if win == 1 else 0
        sres = [("ST", k + 4 * sb) for k in range(ntiles)]
        P.dsr("ds_read_b128", a, aRD, ST_OFF + sb * ST2D, res=sres)
        P.dsr("ds_read_b128", b, aRD, ST_OFF + sb * ST2D + 1024, res=sres)
        P.v("v_add_f32", a[0], a[0], a[2]); P.v("v_add_f32", a[1], a[1], a[3])
        P.v("v_add_f32", b[0], b[0], b[2]); P.v("v_add_f32", b[1], b[1], b[3])
        P.v("v_add_f32", a[0], a[0], b[0]); P.v("v_add_f32", a[1], a[1], b[1])
        P.v("v_mul_f32", a[2], sINV, a[0])
        P.v("v_mul_f32", a[1], sINV, a[1])
        P.v("v_fma_f32", a[1], ("-%s", a[2]), a[2], a[1])
        P.v("v_max_f32", a[1], 0, a[1])
        P.v("v_add_f32", a[1], sEPS, a[1])
        P.v("v_rsq_f32", a[0], a[1])
        P.v("v_mul_f32", a[1], ("-%s", a[2]), a[0])
        P.dsw("ds_write_b64", aW128, a[0:2], BC_OFF, res=[("BC",)])
        prs = [b[0:2], b[2:4], a[2:4], a[0:2]]
        for k in range(ntiles): P.dsr("ds_read_b64", prs[k], aBCR, 256 * k, res=[("BC",)])
        if ntiles < 4: ra.rel(prs[3])
        return prs
    def norm_tile(kind, tt, acc, pr):
        P.tag = f"norm{kind}.{tt}"
        for q in range(12): P.v("v_fma_f32", acc[q >> 2][q & 3], acc[q >> 2][q & 3], pr[0], pr[1])
        ra.rel(pr)
        hq, hp = pack3(acc)
        if kind == "X":
            P.dsw("ds_write_b128", aXW128, hq, HX_OFF, res=[("HX",)])
            P.dsw("ds_write_b64", aXW64, hp, HX_OFF, res=[("HX",)])
        else:
            o = H_OFF[kind & 1] + tt * 6144
            P.dsw("ds_write_b128", aW128, hq, o, res=[("H", kind & 1)])
            P.dsw("ds_write_b64", aW64, hp, o, res=[("H", kind & 1)])
        ra.rel(hq, hp)

    def hfrag(f, win, tt, ks):
        if tt == "X": P.dsr("ds_read_b128", f, aXRD, HX_OFF + 256 * ks, res=[("HX",)])
        else: P.dsr("ds_read_b128", f, aRD, H_OFF[win & 1] + tt * 6144 + 1024 * ks, res=[("H", win & 1)])

    def gemm(win, tt, parts, fr, VA, pd=None):
        P.tag = f"{parts}{win}.{tt}"
        accs = {p: [ra.q() for _ in range(3)] for p in parts}
        out = {}
        def fin(p, dt):
            d = accs[p][dt]
            if p == "V":
                if tt == 0:
                    VA.append(d); dst = d[0:2]
                elif tt == 1: dst = VA[dt][2:4]
                elif tt == 2: dst = VB[4 * dt:4 * dt + 2]
                else: dst = VB[4 * dt + 2:4 * dt + 4]
            elif tt == "X": dst = (KX if p == "K" else QX)[2 * dt:2 * dt + 2]
            elif dt < 2: dst = accs[p][0][2 * dt:2 * dt + 2]
            else:
                dst = pd if pd is not None else d[0:2]
                out[p] = (accs[p][0], dst); out["hi"] = d[2:4]
            P.v("v_cvt_pk_bf16_f32", dst[0], d[0], d[1]); P.v("v_cvt_pk_bf16_f32", dst[1], d[2], d[3])
        cl = CFG.get(f"cl{parts[0]}{win}", CFG["cl"] if not (win == 0) else CFG["cl0"])
        for k0 in range(0, 6, cl):
            fs = {}
            for p in parts:
                for dt in range(3):
                    for ks in range(k0, k0 + cl):
                        if ks not in fs:
                            fs[ks] = ra.q(); hfrag(fs[ks], win, tt, ks)
                        f = fs[ks]
                        w = wunit({"K": SL_K, "V": SL_V, "Q": SL_Q}[p], ks)
                        d = accs[p][dt]
                        if p == "V": P.mfma32(d, f, w[dt], d if ks else 0)
                        else: P.mfma32(d, w[dt], f, d if ks else 0)
                    if k0 + cl == 6 and cl > 1: fin(p, dt)
        if cl == 1:
            for p in parts:
                for dt in range(3): fin(p, dt)
        return out

    def scores(win, qt, Ks, qp):
        P.tag = f"S{win}.{qt}"
        s = [ra.q() for _ in range(4)]
        for kt in range(4): P.mfma32(s[kt], Ks[kt][0], qp[0], 0)
        for kt in range(4): P.mfma16(s[kt], Ks[kt][1], qp[1], s[kt])
        if qt != "X": ra.rel(*qp)
        return s
    def softmax(win, qt, s):
        P.tag = f"sm{win}.{qt}"
        sx = s[3][win]
        fre = [s[3][k] for k in range(4) if k != win]
        m, t2 = fre[0], fre[1]
        vals = [s[k >> 2][k & 3] for k in range(12)] + [sx]
        P.v("v_max3_f32", m, vals[0], vals[1], vals[12])
        P.v("v_max3_f32", t2, vals[2], vals[3], vals[4])
        P.v("v_max3_f32", m, m, vals[5], vals[6])
        P.v("v_max3_f32", t2, t2, vals[7], vals[8])
        P.v("v_max3_f32", m, m, vals[9], vals[10])
        P.v("v_max3_f32", m, m, t2, vals[11])
        P.v("v_mov_b32", t2, m)
        P.swap("v_permlane32_swap_b32", m, t2)
        P.v("v_max_f32", m, m, t2)
        P.v("v_mov_b32", t2, m)
        P.swap("v_permlane16_swap_b32", m, t2)
        P.v("v_max_f32", m, m, t2)
        P.v("v_mul_f32", m, sC, m)
        for x in vals:
            P.v("v_fma_f32", x, x, sC, ("-%s", m))
        for x in vals: P.v("v_exp_f32", x, x)
        a, b, c = s[0], s[1], s[2]
        P.v("v_cvt_pk_bf16_f32", a[0], a[0], a[1]); P.v("v_cvt_pk_bf16_f32", a[1], a[2], a[3])
        P.v("v_cvt_pk_bf16_f32", a[2], b[0], b[1]); P.v("v_cvt_pk_bf16_f32", a[3], b[2], b[3])
        P.v("v_cvt_pk_bf16_f32", c[0], c[0], c[1]); P.v("v_cvt_pk_bf16_f32", c[1], c[2], c[3])
        if win & 1: P.v("v_cvt_pk_bf16_f32", c[2 + (win >> 1)], 0, sx)
        else: P.v("v_cvt_pk_bf16_f32", c[2 + (win >> 1)], sx, 0)
        P.v("v_mov_b32", c[3 - (win >> 1)], 0)
        ra.rel(b, s[3])
        return a, c
    def scoresX(win, Ks):
        P.tag = f"S{win}.X"
        s = [ra.q() for _ in range(4)]
        for kt in range(4): P.mfma32(s[kt], QX[0:4], Ks[kt][0], 0)
        for kt in range(4): P.mfma16(s[kt], QX[4:6], Ks[kt][1], s[kt])
        P.tag = f"sm{win}.X"
        z = s[3][win]
        P.raw("s_mov_b32 vcc_lo, 0", wr=["vcc"]); P.raw(f"s_mov_b32 vcc_hi, {hex(1 << (16 + win))}", rd=["vcc"], wr=["vcc"])
        mi = s[3][(win + 1) & 3]
        P.v("v_mov_b32", mi, "0xff800000")
        P.v("v_cndmask_b32", z, mi, z, "vcc")
        for kt in range(3):
            P.v("v_mov_b32_dpp", z, s[kt][win], rmw=True, mods=f"quad_perm:[0,1,2,3] row_mask:{hex(1 << kt)} bank_mask:0xf")
        return s[3]
    def softmaxX(win, sq):
        P.tag = f"sm{win}.X"
        z = sq[win]; m = sq[(win + 1) & 3]
        P.v("v_mul_f32", z, sC, z)
        def red(op):
            P.v(op + "_dpp", m, z, z, mods="row_ror:8 row_mask:0xf bank_mask:0xf")
            for k in (4, 2, 1): P.v(op + "_dpp", m, m, m, mods=f"row_ror:{k} row_mask:0xf bank_mask:0xf")
            P.v(op + "_dpp", m, m, m, mods="row_bcast:15 row_mask:0xa bank_mask:0xf")
            P.v(op + "_dpp", m, m, m, mods="row_bcast:31 row_mask:0xc bank_mask:0xf")
            P.v("v_readlane_b32", sXR, m, 63)
        red("v_max_f32")
        P.v("v_subrev_f32", z, sXR, z)
        P.v("v_exp_f32", z, z)
        red("v_add_f32")
        P.v("v_rcp_f32", m, sXR)
        P.v("v_mul_f32", z, z, m)
        P.v("v_cvt_pk_bf16_f32", z, z, z)
        if win == 0:
            l16, tq = pxq[2], pxq[3]
            P.s("s_lshl_b32", sTMP, sW, 8)
            P.s("s_add_u32", sTMP, sTMP, HB)
            P.v("v_subrev_u32", l16, HB, aRD, extra_rd=z.regs())
            P.v("v_lshrrev_b32", tq, 8, l16)
            P.v("v_lshl_add_u32", aPR, tq, 4, sTMP)
            P.v("v_lshrrev_b32", tq, 9, l16)
            P.v("v_lshl_add_u32", aPW, tq, 6, sTMP)
            P.v("v_bfe_u32", tq, l16, 6, 2)
            P.v("v_lshl_add_u32", aPW, tq, 4, aPW)
            P.v("v_bfe_u32", tq, l16, 8, 1)
            P.v("v_lshl_add_u32", aPW, tq, 3, aPW)
            P.v("v_bfe_u32", tq, l16, 4, 2)
            P.v("v_lshl_add_u32", aPW, tq, 1, aPW)
        P.dsw("ds_write_b16", aPW, z, 0, res=[("PX",)])
        pa, pb = ra.q(), ra.q()
        P.dsr("ds_read_b128", pa, aPR, 0, res=[("PX",)])
        P.dsr("ds_read_b128", pb, aPR, 64, res=[("PX",)])
        return pa, pb
    def pvX(win, pp, VA):
        P.tag = f"PV{win}.X"
        pa, pb = pp
        oa = [ra.q() for _ in range(3)]
        for dt in range(3): P.mfma32(oa[dt], VA[dt], pa, 0)
        for dt in range(3): P.mfma32(oa[dt], VB[4 * dt:4 * dt + 4], pb, oa[dt])
        return oa, None
    def pv(win, qt, pp, VA):
        P.tag = f"PV{win}.{qt}"
        pa, pb = pp
        oa = [ra.q() for _ in range(3)]; ls = ra.q()
        P.mfma32(ls, ONES[0:4], pa, 0)
        for dt in range(3): P.mfma32(oa[dt], VA[dt], pa, 0)
        P.mfma32(ls, ONES[2:6], pb, ls)
        for dt in range(3): P.mfma32(oa[dt], VB[4 * dt:4 * dt + 4], pb, oa[dt])
        ra.rel(pa, pb)
        return oa, ls
    def onorm(win, qt, ol):
        P.tag = f"on{win}.{qt}"
        oa, ls = ol
        if ls is not None:
            P.v("v_rcp_f32", ls[0], ls[0])
            for q in range(12): P.v("v_mul_f32", oa[q >> 2][q & 3], oa[q >> 2][q & 3], ls[0])
        ra.rel(ls)
        oq, op = pack3(oa)
        if qt == "X":
            P.begin_bundle()
            P.s("s_mov_b64", "exec", sMX[win])
            P.dsw("ds_write_b128", aXW128, oq, OX_OFF, res=[("OX",)])
            P.dsw("ds_write_b64", aXW64, op, OX_OFF, res=[("OX",)])
            P.s("s_mov_b64", "exec", -1)
            P.end_bundle()
        else:
            o = O_OFF + qt * 6144
            P.dsw("ds_write_b128", aW128, oq, o, res=[("O", qt)])
            P.dsw("ds_write_b64", aW64, op, o, res=[("O", qt)])
        ra.rel(oq, op)

    def proj_init(win, tt, x0):
        P.tag = f"proj{win}.{tt}"
        if tt == "X":
            xq, xp = ra.q(), ra.p()
            P.dsr("ds_read_b128", xq, aXW128, X0X_OFF, res=[("X0X",)])
            P.dsr("ds_read_b64", xp, aXW64, X0X_OFF, res=[("X0X",)])
        else: xq, xp = x0
        acc = [ra.q() for _ in range(3)]
        bit = 12 if tt == "X" else win * 3 + tt
        for ct, x in enumerate((xq[0:2], xq[2:4], xp)):
            if (CFG["iv"] >> bit) & 1:
                for k in range(2):
                    P.v("v_lshlrev_b32", acc[ct][2 * k], 16, x[k])
                    P.v("v_and_b32", acc[ct][2 * k + 1], "0xffff0000", x[k])
            else: P.mfma16(acc[ct], IDENT, x, 0)
        return acc
    def proj_tile(win, tt, acc, axrd=None, astx=None):
        P.tag = f"proj{win}.{tt}"
        cl = CFG.get(f"clP{win}", CFG["cl"])
        for k0 in range(0, 6, cl):
            fs = {}
            for ct in range(3):
                for ks in range(k0, k0 + cl):
                    if ks not in fs:
                        f = fs[ks] = ra.q()
                        if tt == "X": P.dsr("ds_read_b128", f, axrd, OX_OFF + 256 * ks, res=[("OX",)])
                        else: P.dsr("ds_read_b128", f, aRD, O_OFF + tt * 6144 + 1024 * ks, res=[("O", tt)])
                    P.mfma32(acc[ct], wunit(SL_O, ks)[ct], fs[ks], acc[ct])
        for ct in range(3):
            d = acc[ct]
            P.v("v_cvt_pk_bf16_f32", d[0], d[0], d[1]); P.v("v_cvt_pk_bf16_f32", d[1], d[2], d[3])
            if tt == "X": P.vst("buffer_store_dwordx2", d[0:2], astx, srdOUT, sROW, 32 * ct, CFG["stflags"])
            else: P.dsw("ds_write_b64", aOW[tt], d[0:2], 32 * ct, res=[("OUT", tt)])
    def out_rows(win, rows):
        for r in rows:
            P.tag = f"out{win}.{r >> 1}"
            f = ra.q()
            P.dsr("ds_read_b128", f, aOR, r * 7 * OPX, res=[("OUT", r >> 1)] if r < 6 else [("OUT", k) for k in range(3)])
            so = nso(); P.s("s_add_u32", so, sROW, (win * 7 + r) * 86016)
            if r == 6:
                P.begin_bundle(); P.s("s_mov_b64", "exec", sM6)
            P.vst("buffer_store_dwordx4", f, voffO, srdOUT, so, 0, CFG["stflags"])
            if r == 6:
                P.s("s_mov_b64", "exec", -1); P.end_bundle()

    nsync = [0]
    def bar(tag, res):
        if tag in ("B0", "B1") or tag in CFG["hard"].split("/") or not CFG["soft"]:
            P.tag = tag; P.bar(res); return
        nsync[0] += 1; k = nsync[0]
        q = ra.q()
        res = list(res)
        P.tag = f"arr {tag}"
        P.v("v_mov_b32", q[0], k)
        i = P.dsw("ds_write_b32", aXW128, q[0], 4608, res=res + [("SY", k), ("FL",)]); i.res_rd |= set(res)
        P.tag = f"poll {k}"
        P.dsr("ds_read_b32", q[1], aRD, 0, res=[("SY", k)])
        P.tag = f"chk {k} {tag}"
        P.begin_bundle()
        P.v("v_cmp_gt_u32", "vcc", k, q[1])
        P.raw(f"s_cbranch_vccnz L_slow{k}\nL_back{k}:", "salu", rd=[], res_rd=res, res_wr=res)
        P.end_bundle()
    XTr = lambda a, b: [("XT", r) for r in range(a, b)]
    RGr = [("RG", k) for k in LOC]
    fr = None

    def conv3(win):
        pq = ra.q()
        return [lambda: conv_tile(win, 0, 0, pq[0:2]), lambda: conv_tile(win, 1, 1, pq[2:4]), lambda: conv_tile(win, 2, 2)]
    ST3 = [("ST", k) for k in range(3)]; ST4 = ST3 + [("ST", 3)]
    b0 = CFG["b0"]
    bar("B0", XTr(0, 9) if b0 == 1 else XTr(4, 9))
    CV = {}; KK = {}
    late_setup()
    assert not CFG["soft"]
    c0 = conv3(0); CV[0] = [None] * 3
    CV[0][2] = c0[2]()
    if b0 == 2: bar("B0b", XTr(0, 4))
    if b0 == 3: bar("B0b", XTr(2, 4))
    CV[0][1] = c0[1]()
    if b0 == 3: bar("B0c", XTr(0, 2))
    CV[0][0] = c0[0]()
    STB = [("ST", 4 + k) for k in range(4)]
    su = CFG["su"]
    bar("B1", ST3 + [("PATCH",), ("FL",), ("DW",), ("H", 0)] + (XTr(9, 16) if su == 0 else []))
    prs = norm_head(0, 3)
    cvx = conv_tile("X", 0, 3)
    cf = conv3(1); CV[1] = []
    for tt in range(3):
        norm_tile(0, tt, CV[0][tt][0], prs[tt])
        if su == 0: CV[1].append(cf[tt]())
    late_setup2()
    if su == 1: bar("B2", [("H", 0), ("PATCH",), ("RG", "O")] + XTr(9, 16))
    wstep(firstX, max(lastHO + 1, 6))
    O3 = [("O", k) for k in range(3)]; OUT3 = [("OUT", k) for k in range(3)]
    KXp, QXp = (KX[0:4], KX[4:6]), (QX[0:4], QX[4:6])
    def kstep(w, upto):
        kk = KK.setdefault(w, [])
        while len(kk) < upto:
            n_ = len(kk)
            kk.append(gemm(w, n_, "K", fr, None, kk[0]["hi"] if n_ == 1 else None))
    def convK(cw, kw, kpre):
        cf = conv3(cw) if cw is not None else None
        if cw is not None: CV[cw] = []
        for tt in range(3):
            if cw is not None: CV[cw].append(cf[tt]())
            if kw is not None and tt < kpre: kstep(kw, tt + 1)
    eo = CFG["eo"]
    if su == 1: convK(1, 0, CFG["k0i"])
    for win in range(4):
        nxt = win + 1 if win < 3 else None
        prv = win - 1 if win else None
        n2 = win + 2 if (win + 2 < 4) else None
        VA = []
        bar(f"Bs{win}", ST4 + O3 + OUT3[eo:] + (XTr(0, 16) + [("RG", k) for k in ("H", "O", "X0", "X1")] + ([("H", 0)] if su == 0 else []) + [("H", 1), ("PATCH",)] + STB if win == 0 else []))
        if win == 0:
            wstep(CFG["rf_at"])
            for r in range(9): xrow(14 + r, r, dt=90)
            wstep(24, 24)
        if nxt is not None: prs = norm_head(nxt, 4 if win == 0 else 3)
        if win == 0:
            norm_tile("X", 0, cvx[0], prs[3])
            bar("Bhx", [("HX",)])
        kstep(win, 3)
        kk = KK[win]; Ks = [kk[0]["K"], kk[1]["K"], kk[2]["K"], KXp]; qpd = kk[2]["hi"]
        if nxt is not None: norm_tile(nxt, 0, CV[nxt][0][0], prs[0])
        if win == 0:
            if nxt is not None: norm_tile(nxt, 1, CV[nxt][1][0], prs[1])
            gemm(0, "X", "KQ", fr, VA)
        if win == 3 and CFG["fine3"]:
            def xaddr():
                P.tag = "xaddr"
                xa = ra.q(); axrd, astx, e1_, e2_ = xa[0], xa[1], xa[2], xa[3]
                P.s("s_lshl_b32", sT3[0], sW, 8)
                P.v("v_subrev_u32", axrd, sT3[0], aXW128)
                P.v("v_subrev_u32", e1_, HB, aRD)
                P.v("v_bfe_u32", e2_, e1_, 4, 4)
                P.v("v_cmp_gt_u32", "vcc", 4, e2_)
                P.v("v_mul_u32_u24", e2_, 7 * 86016, e2_)
                P.v("v_lshrrev_b32", e1_, 8, e1_)
                P.v("v_lshl_add_u32", e1_, e1_, 3, e2_)
                P.s("s_mul_i32", sTMP, sCOL, 7 * 384)
                P.s("s_add_u32", sTMP, sTMP, sWOFF)
                P.s("s_add_u32", sTMP, sTMP, 6 * 86016)
                P.v("v_add_u32", e1_, sTMP, e1_)
                P.v("v_bfrev_b32", e2_, 2)
                P.v("v_cndmask_b32", astx, e2_, e1_, "vcc")
                return axrd, astx
            axrd, astx = xaddr()
            sX = scoresX(win, Ks)
            q0 = gemm(win, 0, "QV", fr, VA, qpd)["Q"]
            pX = softmaxX(win, sX)
            out_rows(prv, range(2 * eo, 7))
            s0 = scores(win, 0, Ks, q0)
            if CFG["fine3"] == 1:
                gemm(win, 1, "V", fr, VA); gemm(win, 2, "V", fr, VA)
                p0 = softmax(win, 0, s0)
                q1 = gemm(win, 1, "Q", fr, VA, qpd)["Q"]
            else:
                q1 = gemm(win, 1, "QV", fr, VA, qpd)["Q"]
                gemm(win, 2, "V", fr, VA)
                p0 = softmax(win, 0, s0)
            s1 = scores(win, 1, Ks, q1)
            oX = pvX(win, pX, VA); o0 = pv(win, 0, p0, VA)
            q2 = gemm(win, 2, "Q", fr, VA, qpd)["Q"]
            onorm(win, "X", oX); onorm(win, 0, o0)
            pa0 = proj_init(win, 0, CV[win][0][1]); paX = proj_init(3, "X", None)
            bar("Ba3", [("O", 0), ("OX",)] + OUT3)
            s2 = scores(win, 2, Ks, q2)
            proj_tile(win, 0, pa0)
            p1 = softmax(win, 1, s1)
            o1 = pv(win, 1, p1, VA)
            proj_tile(3, "X", paX, axrd, astx)
            onorm(win, 1, o1)
            pa1 = proj_init(win, 1, CV[win][1][1])
            bar("Bb3", [("O", 1), ("OUT", 0)])
            proj_tile(win, 1, pa1)
            p2 = softmax(win, 2, s2)
            out_rows(win, range(0, 2))
            onorm(win, 2, pv(win, 2, p2, VA))
            pa2 = proj_init(win, 2, CV[win][2][1])
            bar("Bc3", [("O", 2), ("OUT", 1)])
            proj_tile(win, 2, pa2)
            out_rows(win, range(2, 4))
            bar("Bz", [("OUT", 2)])
            out_rows(win, range(4, 7))
            return P, ra, nfixed
        if win == 0 and CFG['split0']:
            q0 = gemm(win, 0, "Q", fr, VA, qpd)["Q"]
            norm_tile(nxt, 2, CV[nxt][2][0], prs[2])
            s0 = scores(win, 0, Ks, q0)
            q1 = gemm(win, 1, "Q", fr, VA, qpd)["Q"]
            gemm(win, 0, "V", fr, VA)
            p0 = softmax(win, 0, s0)
            s1 = scores(win, 1, Ks, q1)
            gemm(win, 1, "V", fr, VA)
            q2 = gemm(win, 2, "QV", fr, VA, qpd)["Q"]
        else:
            if win == 3: sX = scoresX(win, Ks)
            q0 = gemm(win, 0, "QV", fr, VA, qpd)["Q"]
            if win == 3: pX = softmaxX(win, sX)
            if prv is not None: out_rows(prv, range(2 * eo, 4))
            if nxt is not None and win: norm_tile(nxt, 1, CV[nxt][1][0], prs[1])
            if prv is not None: out_rows(prv, range(4, 7))
            if nxt is not None: norm_tile(nxt, 2, CV[nxt][2][0], prs[2])
            s0 = scores(win, 0, Ks, q0)
            q1 = gemm(win, 1, "QV", fr, VA, qpd)["Q"]
            p0 = softmax(win, 0, s0)
            s1 = scores(win, 1, Ks, q1)
            q2 = gemm(win, 2, "QV", fr, VA, qpd)["Q"]
        if win == 0:
            gemm(0, "X", "V", fr, VA)
            P.tag = "vx"
            P.v("v_cmp_gt_u32", "vcc", HB + 256, aRD)
            for dt in range(3):
                for k in range(2):
                    r = VB[4 * dt + 2 + k]; P.v("v_cndmask_b32", r, 0, r, "vcc")
        p1 = softmax(win, 1, s1)
        o0 = pv(win, 0, p0, VA)
        s2 = scores(win, 2, Ks, q2)
        onorm(win, 0, o0)
        o1 = pv(win, 1, p1, VA)
        if win < 3: sX = scoresX(win, Ks)
        else: oX = pvX(win, pX, VA)
        onorm(win, 1, o1)
        pa0 = proj_init(win, 0, CV[win][0][1])
        bar(f"Ba{win}", ST4 + [("O", 0), ("O", 1), ("H", 0), ("H", 1)] + OUT3 + (RGr + XTr(9, 16) + STB + [("O", 2)] if win == 0 else []))
        if win == 0:
            clk[0] = 0
            for r in range(9, 16): xrow(14 + r, r)
        proj_tile(win, 0, pa0)
        p2 = softmax(win, 2, s2)
        o2 = pv(win, 2, p2, VA)
        pa1 = proj_init(win, 1, CV[win][1][1])
        proj_tile(win, 1, pa1)
        onorm(win, 2, o2)
        if win == 3:
            onorm(win, "X", oX)
            P.tag = "xaddr"
            xa = ra.q(); axrd, astx, e1_, e2_ = xa[0], xa[1], xa[2], xa[3]
            P.s("s_lshl_b32", sT3[0], sW, 8)
            P.v("v_subrev_u32", axrd, sT3[0], aXW128)
            P.v("v_subrev_u32", e1_, HB, aRD)
            P.v("v_bfe_u32", e2_, e1_, 4, 4)
            P.v("v_cmp_gt_u32", "vcc", 4, e2_)
            P.v("v_mul_u32_u24", e2_, 7 * 86016, e2_)
            P.v("v_lshrrev_b32", e1_, 8, e1_)
            P.v("v_lshl_add_u32", e1_, e1_, 3, e2_)
            P.s("s_mul_i32", sTMP, sCOL, 7 * 384)
            P.s("s_add_u32", sTMP, sTMP, sWOFF)
            P.s("s_add_u32", sTMP, sTMP, 6 * 86016)
            P.v("v_add_u32", e1_, sTMP, e1_)
            P.v("v_bfrev_b32", e2_, 2)
            P.v("v_cndmask_b32", astx, e2_, e1_, "vcc")
        pa2 = proj_init(win, 2, CV[win][2][1])
        if nxt is not None: kstep(nxt, CFG.get(f"kb{win}", CFG["kb"]))
        bar(f"Bb{win}", [("O", 2), ("OX",)] + OUT3[:eo] + (XTr(0, 9) if win == 0 else []) + (XTr(9, 16) if win == 1 else []))
        proj_tile(win, 2, pa2)
        out_rows(win, range(0, 2 * eo))
        if win < 3:
            pX = softmaxX(win, sX); oX = pvX(win, pX, VA); onorm(win, "X", oX)
            convK(n2, nxt, CFG.get(f"ki{win}", CFG["ki"]))
    pa = proj_init(3, "X", None)
    proj_tile(3, "X", pa, axrd, astx)
    bar("Bz", OUT3[eo:])
    out_rows(3, range(2 * eo, 7))
    return P, ra, nfixed

def emit(path, mode="idx", stamps=False, trace=None, **kw):
    sched.SYNC_DIST[0] = CFG['sdist']
    P, ra, nfixed = gen(stamps)
    head = []
    late = [(set(V(4 * k, 4).regs()), [4 * k]) for k in range(5)] + [(set(convA.regs()), [convA.i + 4 * k for k in range(9)])]
    skw = {k: CFG[k] for k in ("kahead", "window", "merge", "reserve", "vm_gap", "l2lat", "inflight", "st_gap", "w_gap", "w_wt", "mslack", "ldsq", "ldslat", "fslack", "vwin", "kscan", "bw", "tagoff", "tstall", "hbmlat", "dmaf", "dmaw", "chainp", "dmac") if k in CFG}
    lines, st, marks = schedule5(P.ins, list(range(20, NPOOL, 4)), late, ra.octs, nfixed=nfixed, t0=250, trace=trace, **skw)
    print("sim", st, marks)
    cnt = {}
    for i in P.ins:
        for x in flat(i): cnt[x.kind] = cnt.get(x.kind, 0) + 1
    print(cnt)
    if stamps:
        FS = list(range(3, 16)) + [47, 50, 51] + list(range(93, 102))
        nl = []; k = 0
        def stamp(k):
            return ["    s_memtime s[82:83]", "    s_waitcnt lgkmcnt(0)", f"    s_sub_u32 s{FS[k]}, s82, s78"]
        for l in lines:
            if ("s_barrier" in l or "L_back" in l) and stamps != 2:
                nl.append(l); nl += stamp(k); k += 1
            else: nl.append(l)
        nl += stamp(k)
        nl += ["    s_waitcnt vmcnt(0)"] + stamp(k + 1)
        nl += ["    s_memrealtime s[82:83]", "    s_waitcnt lgkmcnt(0)", "    v_mov_b32 v1, 0"]
        nl += [f"    v_writelane_b32 v1, s{FS[j]}, {j}" for j in range(k + 2)]
        nl += ["    v_writelane_b32 v1, s80, 62", "    v_writelane_b32 v1, s82, 63",
               "    s_mov_b32 s74, 0x10000000", "    s_mov_b32 s75, 0x20000",
               "    v_mbcnt_lo_u32_b32 v0, -1, 0", "    v_mbcnt_hi_u32_b32 v0, -1, v0", "    v_lshlrev_b32 v0, 2, v0",
               "    s_lshl_b32 s82, s2, 2", "    s_add_u32 s82, s82, s36", "    s_lshl_b32 s82, s82, 8",
               "    buffer_store_dword v1, v0, s[72:75], s82 offen"]
        lines = nl
    slow = []
    import re
    for l in lines:
        m = re.search(r"; poll (\d+)$", l)
        if m:
            k = m.group(1)
            cmp_ = [x for x in lines if "v_cmp_gt_u32" in x and f"; chk {k} " in x][0]
            slow += [f"L_slow{k}:", l.split(";")[0].rstrip(), "    s_waitcnt lgkmcnt(0)", cmp_.split(";")[0].rstrip(),
                     f"    s_cbranch_vccnz L_slow{k}", f"    s_branch L_back{k}"]
    lines = [l.replace("s_getpc_b64 s[88:89]", "s_getpc_b64 s[88:89]\nL_pc:").replace("CODE_REMAIN", "L_end-L_pc") for l in lines]
    src = open("cdna_kernels/" + NAME + ".s.ref").read().split("\n")
    hdr = [l for l in src if l.startswith(";") and "@launch" not in l]
    txt = "\n".join(hdr) + f"\n; @launch grid=(256,1,1) block=(256,1,1) lds={LDS_TOTAL}\n"
    txt += f""".amdgcn_target "amdgcn-amd-amdhsa--gfx950"
.text
.globl {NAME}_kernel
.p2align 8
.type {NAME}_kernel,@function
{NAME}_kernel:
""" + "\n".join(head) + "\n" + "\n".join(lines) + f"""
L_end:
    s_endpgm
""" + "\n".join(slow) + f"""
.section .rodata,"a"
.p2align 6
.amdhsa_kernel {NAME}_kernel
  .amdhsa_next_free_vgpr 512
  .amdhsa_next_free_sgpr 102
  .amdhsa_accum_offset 256
  .amdhsa_group_segment_fixed_size 0
  .amdhsa_kernarg_size 56
  .amdhsa_user_sgpr_count 2
  .amdhsa_user_sgpr_kernarg_segment_ptr 1
  .amdhsa_system_sgpr_workgroup_id_x 1
.end_amdhsa_kernel
"""
    open(path, "w").write(txt)

if __name__ == "__main__":
    import argparse
    ap = argparse.ArgumentParser()
    ap.add_argument("-o", default="cdna_kernels/" + NAME + ".s")
    ap.add_argument("--mode", default="idx")
    ap.add_argument("--stamps", type=int, default=0)
    ap.add_argument("--trace", default="")
    ap.add_argument("--cfg", default="")
    ap.add_argument("--json", default="")
    a = ap.parse_args()
    if a.json:
        import json; CFG.update(json.load(open(a.json)))
    for kv in a.cfg.split(","):
        if kv:
            k, v = kv.split("="); CFG[k] = int(v) if v.lstrip("-").isdigit() else (float(v) if v.replace(".","").isdigit() else v)
    tr = [] if a.trace else None
    emit(a.o, a.mode, a.stamps, tr)
    if a.trace:
        open(a.trace, "w").write("\n".join(f"{t} {tag:12s} {txt}" for t, txt, tag in tr))
```
